```python
import torch

def _softmax(x, axis=-1):
    return torch.softmax(x, dim=axis)
def _gelu(x):
    return torch.nn.functional.gelu(x, approximate="tanh")
def _silu(x):
    return torch.nn.functional.silu(x)
def _sigmoid(x):
    return torch.sigmoid(x)
def _layernorm(x, axis=-1, eps=1e-5):
    m = x.mean(dim=axis, keepdim=True)
    v = x.var(dim=axis, keepdim=True, unbiased=False)
    return (x - m) / torch.sqrt(v + eps)
def _scatter_add(tgt, idx, src, axis=0):
    return tgt.clone().index_add_(axis, idx, src)
def _segment_sum(src, seg, n):
    out = torch.zeros((n,) + src.shape[1:], dtype=src.dtype)
    return out.index_add_(0, seg, src)
def _pad(x, pw):
    flat = tuple(v for pair in reversed(pw) for v in pair)
    return torch.nn.functional.pad(x, flat)

kernel_name = 'sequential_preLN__gqa_block_cached__geglu_ffn__decode'

def setup_inputs():

    _w = (lambda a: (lambda t: t.to(torch.bfloat16) if t.is_floating_point() else t)(torch.as_tensor(a)))
    def _A_setup():
        B, Sq, D = 1, 1, 448
        Hq, Hkv, Sk, Dh = 16, 8, 32768, 256
        assert Hq % Hkv == 0, (Hq, Hkv)
        return {
            "x": _w((lambda *s: torch.randn(*s, dtype=torch.bfloat16) * 0.05)(B, Sq, D)),
            "k_cache": _w((lambda *s: torch.randn(*s, dtype=torch.bfloat16) * 3.2)(B, Hkv, Sk, Dh)),
            "v_cache": _w((lambda *s: torch.randn(*s, dtype=torch.bfloat16) * 0.4)(B, Hkv, Sk, Dh)),
            "wq": _w((lambda *s: torch.randn(*s, dtype=torch.bfloat16) * 3.2)(D, Hq * Dh) * (D ** -0.5)),
            "wo": _w((lambda *s: torch.randn(*s, dtype=torch.bfloat16) * 0.4)(Hq * Dh, D) * ((Hq * Dh) ** -0.5)),
        }
    _A_in = _A_setup()

    def _B_setup():
        B, S, D, F = 1, 1, 448, 1792
        return {
            "x": _w((lambda *s: torch.randn(*s, dtype=torch.bfloat16) * 0.05)(B, S, D)),
            "w_gate": _w((lambda *s: torch.randn(*s, dtype=torch.bfloat16) * 0.05)(D, F)),
            "w_up": _w((lambda *s: torch.randn(*s, dtype=torch.bfloat16) * 0.05)(D, F)),
            "w_down": _w((lambda *s: torch.randn(*s, dtype=torch.bfloat16) * 0.05)(F, D)),
        }
    _B_in = _B_setup()

    return {
        "A_x": _A_in["x"],
        "A_k_cache": _A_in["k_cache"],
        "A_v_cache": _A_in["v_cache"],
        "A_wq": _A_in["wq"],
        "A_wo": _A_in["wo"],
        "B_x": _B_in["x"],
        "B_w_gate": _B_in["w_gate"],
        "B_w_up": _B_in["w_up"],
        "B_w_down": _B_in["w_down"],
    }

def reference(A_x, A_k_cache, A_v_cache, A_wq, A_wo, B_x, B_w_gate, B_w_up, B_w_down):
    def _A_ref(x, k_cache, v_cache, wq, wo):
        B, Sq, D = x.shape
        Hq, Dh = 16, 256
        Hkv = k_cache.shape[1]
        rep = Hq // Hkv
        q = (lambda x, *d: x.permute(*d))((x @ wq).reshape(B, Sq, Hq, Dh), 0, 2, 1, 3)
        k = (lambda x, n, axis: torch.repeat_interleave(x, n, dim=axis))(k_cache, rep, axis=1)
        v = (lambda x, n, axis: torch.repeat_interleave(x, n, dim=axis))(v_cache, rep, axis=1)
        scores = torch.einsum("bhqd,bhkd->bhqk", q, k) * (Dh ** -0.5)
        p = _softmax(scores, axis=-1)
        o = torch.einsum("bhqk,bhkd->bhqd", p, v)
        return (lambda x, *d: x.permute(*d))(o, 0, 2, 1, 3).reshape(B, Sq, Hq * Dh) @ wo

    def _B_ref(x, w_gate, w_up, w_down):
        return (_gelu(x @ w_gate) * (x @ w_up)) @ w_down

    x = A_x
    h = x + _A_ref(_layernorm(x, axis=-1), A_k_cache, A_v_cache, A_wq, A_wo)
    h2 = h + _B_ref(_layernorm(h, axis=-1), B_w_gate, B_w_up, B_w_down)
    return h2
```

```python
import sys

NAME = "sequential_preLN__gqa_block_cached__geglu_ffn__decode"
KERN = NAME + "_kernel"
HDR = open("cdna_kernels/%s.s.ref" % NAME).read().split("; Override launch")[0]

WS_EPOCH = 0
WS_QX = 0x1000
WS_PML = 0x8000
WS_PO = 0x10000
WS_Y = 0x100000
WS_Z = 0x110000
WS_STAMP = 64 << 20
WS_SIZE = 512 << 20

LDS_W = 0
LDS_O = 114688
LDS_ML = LDS_O + 16384
LDS_QP = LDS_ML + 128
LDS_Q = LDS_QP + 512
LDS_A = LDS_Q + 1024
LDS_PRIV = LDS_A + 2048
LDS_GU = LDS_PRIV + 8192
LDS_TOTAL = LDS_GU + 512

CEXP = 0x3DB8AA3B
F_INV448 = 0x3B124925
F_448 = 0x43E00000
F_EPS = 0x3727C5AC


class Gen:
    def __init__(self, NS=40, W0=6, W=6, stamps=False, role_even=True, sleep=1):
        self.o = []
        self.NS, self.W0, self.W = NS, W0, W
        self.stamps = stamps
        self.role_even = role_even
        self.sleep = sleep
        self.lab = 0

    def e(self, s):
        for line in s.strip("\n").split("\n"):
            line = line.strip()
            if not line:
                continue
            if line.endswith(":"):
                self.o.append(line)
            else:
                self.o.append("    " + line)

    def label(self, p="L"):
        self.lab += 1
        return f"{p}_{self.lab}"

    def stamp(self, k):
        if not self.stamps:
            return
        skip = self.label("Lst")
        self.e(f"""
        s_cmp_lg_u32 s3, 0
        s_cbranch_scc1 {skip}
        s_memrealtime s[90:91]
        s_waitcnt lgkmcnt(0)
        v_mov_b32 v92, s90
        v_mov_b32 v93, s91
        s_lshl_b32 s92, s2, 7
        s_add_u32 s92, s92, {WS_STAMP + k * 8}
        v_mov_b32 v94, s92
        s_mov_b64 s[94:95], exec
        s_mov_b64 exec, 1
        buffer_store_dwordx2 v[92:93], v94, s[16:19], 0 offen
        s_mov_b64 exec, s[94:95]
        {skip}:
        """)
        self.extra_vm = True

    def rne(self, dst, src, tmp=None):
        tmp = tmp or dst
        self.e(f"v_cvt_pk_bf16_f32 {tmp}, {src}, {src}")
        self.e(f"v_lshlrev_b32 {dst}, 16, {tmp}")

    def wave_sum(self, regs):
        steps = ["row_shr:1 row_mask:0xf bank_mask:0xf bound_ctrl:0",
                 "row_shr:2 row_mask:0xf bank_mask:0xf bound_ctrl:0",
                 "row_shr:4 row_mask:0xf bank_mask:0xf bound_ctrl:0",
                 "row_shr:8 row_mask:0xf bank_mask:0xf bound_ctrl:0",
                 "row_bcast:15 row_mask:0xa bank_mask:0xf",
                 "row_bcast:31 row_mask:0xc bank_mask:0xf"]
        pad = max(0, 3 - len(regs))
        if pad:
            self.e("s_nop 1")
        for st in steps:
            for r in regs:
                self.e(f"v_add_f32_dpp {r}, {r}, {r} {st}")
            if len(regs) < 3:
                self.e(f"s_nop {2 - len(regs) + 0}" if len(regs) == 2 else "s_nop 1")

    def pack4(self, w, v):
        self.e(f"v_perm_b32 {w[0]}, {v[0]}, {v[3]}, s58")
        self.e(f"v_perm_b32 {w[1]}, {v[1]}, {v[3]}, s59")
        self.e(f"v_perm_b32 {w[2]}, {v[2]}, {v[3]}, s60")
        self.e(f"v_xor_b32 {w[3]}, s6, {w[0]}")
        self.e(f"v_xor_b32 {w[3]}, {w[3]}, {w[1]}")
        self.e(f"v_xor_b32 {w[3]}, {w[3]}, {w[2]}")

    def check4(self, bad, w, first):
        self.e(f"v_xor_b32 {w[3]}, {w[3]}, {w[0]}")
        self.e(f"v_xor_b32 {w[3]}, {w[3]}, {w[1]}")
        self.e(f"v_xor_b32 {w[3]}, {w[3]}, {w[2]}")
        if first:
            self.e(f"v_xor_b32 {bad}, s6, {w[3]}")
        else:
            self.e(f"v_xor_b32 {w[3]}, s6, {w[3]}")
            self.e(f"v_or_b32 {bad}, {bad}, {w[3]}")

    def unpack4(self, w):
        self.e(f"v_perm_b32 {w[3]}, {w[1]}, {w[0]}, s61")
        self.e(f"v_perm_b32 {w[3]}, {w[2]}, {w[3]}, s62")

    def poll(self, loads, bad, mask=None):
        lp = self.label("Lpoll")
        dn = self.label("Lpdone")
        self.e(f"s_mov_b32 s7, 0")
        if mask is not None:
            self.e(f"s_mov_b64 exec, {mask}")
        self.e(f"{lp}:")
        for regs, va, off in loads:
            r0 = int(regs[0][1:])
            self.e(f"buffer_load_dwordx4 v[{r0}:{r0+3}], {va}, s[16:19], 0 offen offset:{off} sc1")
        n = len(loads)
        for k, (regs, va, off) in enumerate(loads):
            self.e(f"s_waitcnt vmcnt({n - 1 - k})")
            self.check4(bad, regs, k == 0)
        self.e(f"v_cmp_ne_u32 vcc, 0, {bad}")
        self.e(f"s_add_u32 s7, s7, 1")
        self.e(f"s_cbranch_vccz {dn}")
        self.e(f"s_cmp_gt_u32 s7, 0x8000")
        self.e(f"s_cbranch_scc1 {dn}")
        if self.sleep:
            self.e(f"s_sleep {self.sleep}")
        self.e(f"s_branch {lp}")
        self.e(f"{dn}:")
        for regs, va, off in loads:
            self.unpack4(regs)
        if mask is not None:
            self.e("s_mov_b64 exec, -1")

    def ln_stats(self, f, vm, t):
        e = self.e
        e(f"v_add_f32 {t[0]}, {f[0]}, {f[1]}")
        e(f"v_add_f32 {t[1]}, {f[2]}, {f[3]}")
        e(f"v_add_f32 {t[2]}, {f[4]}, {f[5]}")
        e(f"v_add_f32 {t[3]}, {f[6]}, {f[7]}")
        e(f"v_add_f32 {t[0]}, {t[0]}, {t[1]}")
        e(f"v_add_f32 {t[2]}, {t[2]}, {t[3]}")
        e(f"v_add_f32 {t[0]}, {t[0]}, {t[2]}")
        self.wave_sum([t[0]])
        e(f"v_readlane_b32 s30, {t[0]}, 63")
        e("s_nop 1")
        e(f"v_mov_b32 {t[3]}, s30")
        e(f"v_mul_f32 {t[4]}, 0x{F_INV448:08x}, {t[3]}")
        e(f"v_mov_b32 {t[5]}, 0x{F_448:08x}")
        e(f"v_fma_f32 {t[3]}, -{t[4]}, {t[5]}, {t[3]}")
        e(f"v_mov_b32 {t[5]}, 0x{F_INV448:08x}")
        e(f"v_fma_f32 {t[4]}, {t[3]}, {t[5]}, {t[4]}")
        e(f"v_sub_f32 {t[0]}, {f[0]}, {t[4]}")
        e(f"v_mul_f32 {t[1]}, {t[0]}, {t[0]}")
        for i in range(1, 8):
            e(f"v_sub_f32 {t[0]}, {f[i]}, {t[4]}")
            e(f"v_fma_f32 {t[1]}, {t[0]}, {t[0]}, {t[1]}")
        e(f"v_mul_f32 {t[1]}, {t[1]}, {vm}")
        self.wave_sum([t[1]])
        e(f"v_readlane_b32 s30, {t[1]}, 63")
        e("s_nop 1")
        e(f"v_mov_b32 {t[3]}, s30")
        e(f"v_mul_f32 {t[2]}, 0x{F_INV448:08x}, {t[3]}")
        e(f"v_mov_b32 {t[0]}, 0x{F_448:08x}")
        e(f"v_fma_f32 {t[3]}, -{t[2]}, {t[0]}, {t[3]}")
        e(f"v_fma_f32 {t[2]}, {t[3]}, {t[5]}, {t[2]}")
        self.rne(t[0], t[4])
        self.rne(t[2], t[2])
        e(f"v_add_f32 {t[2]}, 0x{F_EPS:08x}, {t[2]}")
        self.rne(t[2], t[2])
        e(f"v_sqrt_f32 {t[1]}, {t[2]}")
        e("s_nop 0")
        self.rne(t[1], t[1])
        e(f"v_rcp_f32 {t[2]}, {t[1]}")
        e("s_nop 0")

    def ln_apply(self, dst, x, t, a, b):
        e = self.e
        e(f"v_sub_f32 {a}, {x}, {t[0]}")
        self.rne(a, a)
        e(f"v_mul_f32 {b}, {a}, {t[2]}")
        e(f"v_fma_f32 {a}, -{b}, {t[1]}, {a}")
        e(f"v_fma_f32 {b}, {a}, {t[2]}, {b}")
        self.rne(dst, b)

    def unpack8(self, f, src):
        for i in range(4):
            self.e(f"v_lshlrev_b32 {f[2*i]}, 16, {src[i]}")
            self.e(f"v_and_b32 {f[2*i+1]}, 0xffff0000, {src[i]}")

    def stream_load(self, i):
        n, half = (i % 64) >> 1, i & 1
        off = n * 2048 + half * 256
        hi, lo = off & ~4095, off & 4095
        if self.cur_so != hi:
            self.e(f"s_add_u32 s29, s28, {hi}")
            self.cur_so = hi
        slot = (i % self.NS) * 4
        srd, vo = ("s[8:11]", "v1") if i < 64 else ("s[12:15]", "v2")
        self.e(f"buffer_load_dwordx4 a[{slot}:{slot+3}], {vo}, {srd}, s29 offen offset:{lo} nt")

    def slot(self, i):
        s = (i % self.NS) * 4
        return f"a[{s}:{s+3}]"

    def build(self):
        e = self.e
        NS, W0, W = self.NS, self.W0, self.W
        self.cur_so = None
        V = lambda a, n=None: f"v{a}" if n is None else [f"v{a+i}" for i in range(n)]

        e("s_cmp_ge_u32 s2, 256")
        e("s_cbranch_scc1 L_end")
        e("s_load_dwordx16 s[32:47], s[0:1], 0")
        e("s_load_dwordx8 s[48:55], s[0:1], 64")
        e("v_lshrrev_b32 v3, 6, v0")
        e("v_and_b32 v0, 63, v0")
        e("s_and_b32 s4, s2, 7")
        e("v_readfirstlane_b32 s3, v3")
        e("s_lshr_b32 s5, s2, 3")
        e("s_mov_b32 s58, 0x07060501")
        e("s_mov_b32 s59, 0x07060502")
        e("s_mov_b32 s60, 0x07060503")
        e("s_mov_b32 s61, 0x0c04000c")
        e("s_mov_b32 s62, 0x04020100")
        e(f"s_mov_b32 s63, 0x{CEXP:08x}")
        e("v_bfe_u32 v1, v0, 2, 2")
        e("v_lshlrev_b32 v1, 9, v1")
        e("v_lshrrev_b32 v4, 4, v0")
        e("v_lshl_add_u32 v1, v4, 6, v1")
        e("v_and_b32 v5, 3, v0")
        e("v_lshl_add_u32 v1, v5, 4, v1")
        e("v_and_b32 v5, 15, v0")
        e("v_lshlrev_b32 v2, 4, v5")
        e("v_lshl_add_u32 v2, v4, 9, v2")
        e("v_lshlrev_b32 v6, 4, v0")
        e("s_lshl_b32 s30, s3, 1")
        e("v_add_u32 v7, s30, v6")
        e("v_lshlrev_b32 v8, 12, v7")
        e("s_lshl_b32 s30, s4, 10")
        e("s_lshl_b32 s31, s5, 5")
        e("s_add_u32 s30, s30, s31")
        e("v_add_u32 v8, s30, v8")
        e("s_lshl_b32 s28, s4, 24")
        e("s_lshl_b32 s30, s5, 19")
        e("s_add_u32 s28, s28, s30")
        e("s_lshl_b32 s30, s3, 16")
        e("s_add_u32 s28, s28, s30")
        e("v_mov_b32 v9, 0")
        e("s_waitcnt lgkmcnt(0)")
        for base, p, size in ((8, 34, 0x8000000), (12, 36, 0x8000000), (16, 54, WS_SIZE), (20, 32, 896), (24, 38, 3670016)):
            e(f"s_mov_b32 s{base}, s{p}")
            e(f"s_mov_b32 s{base+1}, s{p+1}")
            e(f"s_mov_b32 s{base+2}, 0x{size:x}")
            e(f"s_mov_b32 s{base+3}, 0x20000")
        e("buffer_load_dwordx4 v[16:19], v6, s[20:23], 0 offen")
        e("buffer_load_ushort v20, v7, s[20:23], 0 offen")
        e("buffer_load_dword v21, v9, s[16:19], 0 offen sc1")
        e("buffer_load_dwordx4 v[24:27], v8, s[24:27], 0 offen nt")
        e("buffer_load_dwordx4 v[28:31], v8, s[24:27], 0 offen offset:16 nt")
        self.stamp(0)
        for i in range(W0):
            self.stream_load(i)
        extra = 1 if self.stamps else 0
        e("v_cmp_gt_u32 vcc, 56, v0")
        e("v_mov_b32 v22, 0")
        e("v_mov_b32 v23, 1.0")
        e("v_cndmask_b32 v22, v22, v23, vcc")
        e(f"s_waitcnt vmcnt({W0 + 2})")
        f = V(32, 8)
        self.unpack8(f, V(16, 4))
        e("v_readfirstlane_b32 s6, v21")
        self.ln_stats(f, "v22", V(40, 6))
        e("s_mul_i32 s6, s6, 0x9E3779B1")
        e("s_add_u32 s6, s6, 0x7F4A7C15")
        e("s_or_b32 s6, s6, 1")
        e("v_lshlrev_b32 v20, 16, v20")
        self.ln_apply("v46", "v20", V(40, 6), "v47", "v48")
        e(f"s_waitcnt vmcnt({W0})")
        for i in range(8):
            e(f"v_lshlrev_b32 v{48+2*i}, 16, v{24+i}")
            e(f"v_and_b32 v{49+2*i}, 0xffff0000, v{24+i}")
        for i in range(16):
            e(f"v_mul_f32 v{48+i}, v{48+i}, v46")
        self.wave_sum(V(48, 16))
        e("s_lshl_b32 s30, s3, 6")
        e(f"s_add_u32 s30, s30, {LDS_QP}")
        e("v_mov_b32 v3, s30")
        e("s_mov_b32 s64, 0")
        e("s_mov_b32 s65, 0x80000000")
        e("s_mov_b64 exec, s[64:65]")
        for i in range(4):
            e(f"ds_write_b128 v3, v[{48+4*i}:{51+4*i}] offset:{16*i}")
        e("s_mov_b64 exec, -1")
        e("s_waitcnt lgkmcnt(0)")
        e("s_barrier")
        e("s_cmp_lg_u32 s3, 0")
        e("s_cbranch_scc1 L_pref")
        e("v_lshlrev_b32 v3, 4, v0")
        e(f"v_add_u32 v4, {LDS_QP}, v3")
        e("s_mov_b64 exec, 15")
        for wv in range(8):
            e(f"ds_read_b128 v[{24+4*wv}:{27+4*wv}], v4 offset:{64*wv}")
        e("s_waitcnt lgkmcnt(0)")
        for wv in range(1, 8):
            for j in range(4):
                e(f"v_add_f32 v{24+j}, v{24+j}, v{24+4*wv+j}")
        for j in range(4):
            self.rne(f"v{24+j}", f"v{24+j}")
        self.pack4(V(28, 4), V(24, 4))
        e("s_lshl_b32 s30, s4, 11")
        e("s_lshl_b32 s31, s5, 6")
        e("s_add_u32 s31, s31, s30")
        e(f"s_add_u32 s31, s31, {WS_QX}")
        e("v_add_u32 v4, s31, v3")
        e("buffer_store_dwordx4 v[28:31], v4, s[16:19], 0 offen sc1")
        e("s_mov_b64 exec, -1")
        self.stamp(1)
        e(f"s_add_u32 s30, s30, {WS_QX}")
        e("v_add_u32 v4, s30, v3")
        self.poll([(V(32, 4), "v4", 0), (V(36, 4), "v4", 1024)], "v5")
        e("s_mov_b32 s30, 0x07060302")
        e("v_lshlrev_b32 v3, 3, v0")
        e(f"v_add_u32 v3, {LDS_Q}, v3")
        for i in range(2):
            b = 32 + 4 * i
            e(f"v_perm_b32 v{40+2*i}, v{b+1}, v{b}, s30")
            e(f"v_perm_b32 v{41+2*i}, v{b+3}, v{b+2}, s30")
        e("ds_write_b64 v3, v[40:41]")
        e("ds_write_b64 v3, v[42:43] offset:512")
        so_save = self.cur_so
        for i in range(W0, NS):
            self.stream_load(i)
        e("s_waitcnt lgkmcnt(0)")
        e("s_branch L_qready")
        e("L_pref:")
        self.cur_so = so_save
        for i in range(W0, NS):
            e(f"s_waitcnt vmcnt({W - 1})")
            self.stream_load(i)
        e("L_qready:")
        e("s_barrier")
        self.stamp(2)
        e("v_bfe_u32 v3, v0, 3, 1")
        e("v_lshlrev_b32 v3, 9, v3")
        e("v_lshrrev_b32 v4, 4, v0")
        e("v_lshl_add_u32 v3, v4, 6, v3")
        e("v_and_b32 v5, 3, v0")
        e("v_lshl_add_u32 v3, v5, 4, v3")
        e(f"v_add_u32 v3, {LDS_Q}, v3")
        e("ds_read_b128 v[8:11], v3")
        e("ds_read_b128 v[12:15], v3 offset:256")
        e("v_and_b32 v5, 1, v0")
        e("v_mov_b32 v6, 0xffff")
        e("v_lshlrev_b32 v5, 4, v5")
        e("v_lshlrev_b32 v6, v5, v6")
        e("v_bfe_u32 v7, v0, 1, 2")
        for jj in range(4):
            e(f"v_cmp_eq_u32 vcc, {jj}, v7")
            e("s_nop 1")
            e(f"v_cndmask_b32 v{64+jj}, 0, v6, vcc")
        e("v_mov_b32 v84, 0xff800000")
        e("s_waitcnt lgkmcnt(0)")

        stamp_extra = 0
        issued = NS

        def post_k(n):
            d = 16 + (n % 4) * 4
            t = 32 + n
            e(f"v_mov_b32_dpp v{t}, v{d} quad_perm:[0,0,0,0] row_mask:0xf bank_mask:0xf")
            e(f"v_add_f32_dpp v{t}, v{d+1}, v{t} quad_perm:[1,1,1,1] row_mask:0xf bank_mask:0xf")
            e(f"v_add_f32_dpp v{t}, v{d+2}, v{t} quad_perm:[2,2,2,2] row_mask:0xf bank_mask:0xf")
            e(f"v_add_f32_dpp v{t}, v{d+3}, v{t} quad_perm:[3,3,3,3] row_mask:0xf bank_mask:0xf")
            e(f"v_max_f32 v84, v84, v{t}")

        for n in range(32):
            i = 2 * n
            e(f"s_waitcnt vmcnt({issued - i - 2})")
            d = 16 + (n % 4) * 4
            e(f"v_mfma_f32_16x16x32_bf16 v[{d}:{d+3}], {self.slot(i)}, v[8:11], 0")
            e(f"v_mfma_f32_16x16x32_bf16 v[{d}:{d+3}], {self.slot(i+1)}, v[12:15], v[{d}:{d+3}]")
            for k in range(2):
                if issued < 128:
                    self.stream_load(issued)
                    issued += 1
            if n >= 2:
                post_k(n - 2)
        e("s_nop 7")
        post_k(30)
        post_k(31)
        self.stamp(3)
        e("v_mov_b32 v85, v84")
        e("s_nop 1")
        e("v_permlane32_swap_b32 v84, v85")
        e("s_nop 1")
        e("v_max_f32 v84, v84, v85")
        e("v_mov_b32 v85, v84")
        e("s_nop 1")
        e("v_permlane16_swap_b32 v84, v85")
        e("s_nop 1")
        e("v_max_f32 v84, v84, v85")
        self.rne("v84", "v84")
        e("v_mov_b32 v86, 0")
        e("v_mov_b32 v87, 0")
        for m in range(16):
            a, b = 32 + 2 * m, 33 + 2 * m
            e(f"v_cvt_pk_bf16_f32 v85, v{a}, v{b}")
            e(f"v_lshlrev_b32 v{a}, 16, v85")
            e(f"v_and_b32 v{b}, 0xffff0000, v85")
            e(f"v_sub_f32 v{a}, v{a}, v84")
            e(f"v_sub_f32 v{b}, v{b}, v84")
            e(f"v_mul_f32 v{a}, s63, v{a}")
            e(f"v_mul_f32 v{b}, s63, v{b}")
            e(f"v_exp_f32 v{a}, v{a}")
            e(f"v_exp_f32 v{b}, v{b}")
            e("s_nop 0")
            e(f"v_add_f32 v86, v86, v{a}")
            e(f"v_add_f32 v87, v87, v{b}")
        e("v_add_f32 v86, v86, v87")
        e("v_mov_b32 v85, v86")
        e("s_nop 1")
        e("v_permlane32_swap_b32 v86, v85")
        e("s_nop 1")
        e("v_add_f32 v86, v86, v85")
        e("v_mov_b32 v85, v86")
        e("s_nop 1")
        e("v_permlane16_swap_b32 v86, v85")
        e("s_nop 1")
        e("v_add_f32 v86, v86, v85")

        def build_a(n):
            a = 68 + (n % 2) * 4
            e(f"v_cvt_pk_bf16_f32 v85, v{32+n}, v{32+n}")
            for jj in range(4):
                e(f"v_and_b32 v{a+jj}, v85, v{64+jj}")

        build_a(0)
        for n in range(32):
            i = 64 + 2 * n
            if n + 1 < 32:
                build_a(n + 1)
            else:
                e("s_nop 1")
            e(f"s_waitcnt vmcnt({issued - i - 2})")
            a = 68 + (n % 2) * 4
            c0 = "0" if n == 0 else "v[76:79]"
            c1 = "0" if n == 0 else "v[80:83]"
            e(f"v_mfma_f32_16x16x32_bf16 v[76:79], v[{a}:{a+3}], {self.slot(i)}, {c0}")
            e(f"v_mfma_f32_16x16x32_bf16 v[80:83], v[{a}:{a+3}], {self.slot(i+1)}, {c1}")
            for k in range(2):
                if issued < 128:
                    self.stream_load(issued)
                    issued += 1
        self.stamp(4)
        if self.role_even:
            e("s_lshr_b32 s69, s4, 1")
            e("s_lshl_b32 s30, s5, 2")
            e("s_add_u32 s69, s69, s30")
            e("s_and_b32 s30, s4, 1")
            e("s_cmp_eq_u32 s30, 0")
            e("s_cselect_b32 s69, s69, 255")
        else:
            e("s_lshl_b32 s69, s5, 3")
            e("s_add_u32 s69, s69, s4")
        e("s_mov_b32 s68, 0")
        e("s_cmp_lt_u32 s69, 88")
        e("s_cselect_b32 s68, 2, s68")
        e("s_cmp_lt_u32 s69, 32")
        e("s_cselect_b32 s68, 1, s68")
        e("v_lshrrev_b32 v4, 5, v0")
        e("v_lshlrev_b32 v3, 10, v4")
        e("v_and_b32 v5, 15, v0")
        e("v_lshl_add_u32 v3, v5, 5, v3")
        e("v_bfe_u32 v5, v0, 4, 1")
        e("v_lshl_add_u32 v3, v5, 4, v3")
        e("s_lshl_b32 s30, s3, 11")
        e(f"s_add_u32 s30, s30, {LDS_O}")
        e("v_add_u32 v3, s30, v3")
        e("v_bfe_u32 v5, v0, 3, 1")
        e("v_lshlrev_b32 v6, 6, v5")
        e("s_lshl_b32 s30, s3, 3")
        e(f"s_add_u32 s30, s30, {LDS_ML}")
        e("v_add_u32 v6, s30, v6")
        e("v_mov_b32 v88, v84")
        e("v_mov_b32 v89, v86")
        e("s_nop 4")
        e("ds_write_b128 v3, v[76:79]")
        e("ds_write_b128 v3, v[80:83] offset:512")
        e("s_mov_b64 exec, 0x101")
        e("ds_write_b64 v6, v[88:89]")
        e("s_mov_b64 exec, -1")
        self.role_dma()
        e("s_waitcnt lgkmcnt(0)")
        e("s_barrier")
        e("s_cmp_gt_u32 s3, 1")
        e("s_cbranch_scc1 L_pub_done")
        e("v_lshlrev_b32 v3, 4, v0")
        e("s_lshl_b32 s30, s3, 10")
        e(f"s_add_u32 s31, s30, {LDS_O}")
        e("v_add_u32 v4, s31, v3")
        for wv in range(8):
            e(f"ds_read_b128 v[{32+4*wv}:{35+4*wv}], v4 offset:{2048*wv}")
        e("s_lshl_b32 s30, s3, 6")
        e(f"s_add_u32 s30, s30, {LDS_ML}")
        e("v_mov_b32 v5, s30")
        for k in range(4):
            e(f"ds_read_b128 v[{16+4*k}:{19+4*k}], v5 offset:{16*k}")
        e("s_waitcnt lgkmcnt(0)")
        e("v_max3_f32 v8, v16, v18, v20")
        e("v_max3_f32 v8, v8, v22, v24")
        e("v_max3_f32 v8, v8, v26, v28")
        e("v_max_f32 v8, v8, v30")
        for wv in range(8):
            e(f"v_sub_f32 v{16+2*wv}, v{16+2*wv}, v8")
            e(f"v_mul_f32 v{16+2*wv}, s63, v{16+2*wv}")
            e(f"v_exp_f32 v{16+2*wv}, v{16+2*wv}")
        e("s_nop 0")
        e("v_mul_f32 v9, v16, v17")
        for j in range(4):
            e(f"v_mul_f32 v{12+j}, v16, v{32+j}")
        for wv in range(1, 8):
            e(f"v_fma_f32 v9, v{16+2*wv}, v{17+2*wv}, v9")
            for j in range(4):
                e(f"v_fma_f32 v{12+j}, v{16+2*wv}, v{32+4*wv+j}, v{12+j}")
        self.pack4(V(64, 4), V(12, 4))
        e("s_lshl_b32 s30, s4, 1")
        e("s_add_u32 s30, s30, s3")
        e("s_lshl_b32 s30, s30, 5")
        e("s_add_u32 s30, s30, s5")
        e("s_lshl_b32 s31, s30, 10")
        e(f"s_add_u32 s31, s31, {WS_PO}")
        e("v_add_u32 v4, s31, v3")
        e("buffer_store_dwordx4 v[64:67], v4, s[16:19], 0 offen sc1")
        e("v_mov_b32 v10, 0")
        e("v_mov_b32 v11, 0")
        self.pack4(V(68, 4), ["v9", "v10", "v11", "v8"])
        e("s_lshl_b32 s31, s30, 4")
        e(f"s_add_u32 s31, s31, {WS_PML}")
        e("v_mov_b32 v4, s31")
        e("s_mov_b64 exec, 1")
        e("buffer_store_dwordx4 v[68:71], v4, s[16:19], 0 offen sc1")
        e("s_mov_b64 exec, -1")
        e("s_waitcnt vmcnt(2)")
        e("s_branch L_pub_join")
        e("L_pub_done:")
        e("s_waitcnt vmcnt(0)")
        e("L_pub_join:")
        self.stamp(5)
        e("s_cmp_eq_u32 s68, 0")
        e("s_cbranch_scc1 L_end")
        e("s_cmp_eq_u32 s68, 2")
        e("s_cbranch_scc1 L_s3")
        self.s2()
        e("s_branch L_end")
        e("L_s3:")
        self.s3()
        e("L_end:")
        e("s_endpgm")

    def role_dma(self):
        e = self.e
        e("s_cmp_eq_u32 s68, 0")
        e("s_cbranch_scc1 L_dma_done")
        e("s_cmp_eq_u32 s68, 2")
        e("s_cbranch_scc1 L_dma_s3")
        e("s_mov_b32 s20, s40")
        e("s_mov_b32 s21, s41")
        e("s_mov_b32 s22, 3670016")
        e("s_mov_b32 s23, 0x20000")
        e("s_lshr_b32 s30, s69, 1")
        e("s_mul_i32 s30, s30, %d" % (256 * 896))
        e("s_and_b32 s31, s69, 1")
        e("s_mul_i32 s31, s31, 448")
        e("s_add_u32 s70, s30, s31")
        e("s_lshl_b32 s30, s3, 6")
        e("v_add_u32 v10, s30, v0")
        e("s_lshl_b32 s71, s3, 10")
        e("s_movk_i32 s31, 9363")
        for t in range(14):
            e(f"v_add_u32 v11, {t*512}, v10")
            e("v_mul_lo_u32 v12, v11, s31")
            e("v_lshrrev_b32 v12, 18, v12")
            e("v_mul_u32_u24 v13, 28, v12")
            e("v_sub_u32 v13, v11, v13")
            e("v_mul_u32_u24 v12, 0x380, v12")
            e("v_lshl_add_u32 v12, v13, 4, v12")
            e(f"s_add_u32 m0, s71, {LDS_W + t*8192}")
            e("s_nop 0")
            e("buffer_load_dwordx4 v12, s[20:23], s70 offen nt lds")
        e("s_branch L_dma_done")
        e("L_dma_s3:")
        e("s_lshl_b32 s30, s3, 6")
        e("v_add_u32 v10, s30, v0")
        e("s_lshl_b32 s71, s3, 10")
        e("s_sub_u32 s72, s69, 32")
        e("v_lshrrev_b32 v11, 2, v10")
        e("v_mul_u32_u24 v11, 0xe00, v11")
        e("v_and_b32 v12, 3, v10")
        e("v_lshl_add_u32 v11, v12, 4, v11")
        e("s_lshl_b32 s70, s72, 6")
        for mtx, p in ((0, 44), (1, 46)):
            e(f"s_mov_b32 s20, s{p}")
            e(f"s_mov_b32 s21, s{p+1}")
            e("s_mov_b32 s22, 1605632")
            e("s_mov_b32 s23, 0x20000")
            for t in range(4):
                lab = None
                if t == 3:
                    lab = self.label("Lskip")
                    e("s_cmp_gt_u32 s3, 3")
                    e(f"s_cbranch_scc1 {lab}")
                e(f"s_add_u32 s30, s70, {t*128*3584}")
                e(f"s_add_u32 m0, s71, {LDS_W + mtx*28672 + t*8192}")
                e("s_nop 0")
                e("buffer_load_dwordx4 v11, s[20:23], s30 offen nt lds")
                if lab:
                    e(f"{lab}:")
        e("s_mov_b32 s20, s48")
        e("s_mov_b32 s21, s49")
        e("s_mov_b32 s22, 1605632")
        e("s_mov_b32 s23, 0x20000")
        e("v_lshlrev_b32 v11, 4, v10")
        e("s_mul_i32 s70, s72, 28672")
        for t in range(4):
            lab = None
            if t == 3:
                lab = self.label("Lskip")
                e("s_cmp_gt_u32 s3, 3")
                e(f"s_cbranch_scc1 {lab}")
            e(f"s_add_u32 s30, s70, {t*8192}")
            e(f"s_add_u32 m0, s71, {LDS_W + 57344 + t*8192}")
            e("s_nop 0")
            e("buffer_load_dwordx4 v11, s[20:23], s30 offen nt lds")
            if lab:
                e(f"{lab}:")
        e("L_dma_done:")

    def s2(self):
        e = self.e
        V = lambda a, n: [f"v{a+i}" for i in range(n)]
        e("s_barrier")
        e("v_bfe_u32 v3, v0, 2, 2")
        e("v_lshrrev_b32 v4, 4, v0")
        e("v_lshl_add_u32 v3, v4, 3, v3")
        e("v_mul_u32_u24 v3, 448, v3")
        e("v_and_b32 v4, 3, v0")
        e("v_lshl_add_u32 v3, v4, 3, v3")
        e("s_lshl_b32 s30, s3, 6")
        e(f"s_add_u32 s30, s30, {LDS_W}")
        e("v_add_u32 v3, s30, v3")
        e("v_add_u32 v4, 57344, v3")
        e("s_cmp_gt_u32 s3, 6")
        e("s_cbranch_scc1 L_s2_now")
        for s in range(8):
            base = "v3" if s < 4 else "v4"
            so = (s % 4) * 14336
            for tt in range(2):
                a = (s * 2 + tt) * 4
                e(f"ds_read_b64_tr_b16 a[{a}:{a+1}], {base} offset:{so + tt*32}")
                e(f"ds_read_b64_tr_b16 a[{a+2}:{a+3}], {base} offset:{so + tt*32 + 1792}")
        e("L_s2_now:")
        e("s_lshr_b32 s72, s69, 1")
        e("s_lshl_b32 s30, s72, 15")
        e("s_lshl_b32 s31, s3, 12")
        e("s_add_u32 s30, s30, s31")
        e(f"s_add_u32 s30, s30, {WS_PO}")
        e("v_lshlrev_b32 v5, 4, v0")
        e("v_add_u32 v6, s30, v5")
        e("s_lshl_b32 s30, s72, 9")
        e(f"s_add_u32 s30, s30, {WS_PML}")
        e("v_and_b32 v7, 31, v0")
        e("v_lshlrev_b32 v7, 4, v7")
        e("v_add_u32 v7, s30, v7")
        self.poll([(V(32, 4), "v6", 0), (V(36, 4), "v6", 1024), (V(40, 4), "v6", 2048), (V(44, 4), "v6", 3072),
                   (V(48, 4), "v7", 0)], "v8")
        self.stamp(6)
        e("v_mov_b32 v9, v51")
        e("s_nop 1")
        for st in ("quad_perm:[1,0,3,2]", "quad_perm:[2,3,0,1]", "row_half_mirror", "row_mirror"):
            e(f"v_max_f32_dpp v9, v9, v9 {st} row_mask:0xf bank_mask:0xf")
            e("s_nop 1")
        e("v_mov_b32 v10, v9")
        e("s_nop 1")
        e("v_permlane16_swap_b32 v9, v10")
        e("s_nop 1")
        e("v_max_f32 v9, v9, v10")
        e("v_sub_f32 v10, v51, v9")
        e("v_mul_f32 v10, s63, v10")
        e("v_exp_f32 v10, v10")
        e("s_nop 0")
        e("v_mul_f32 v11, v10, v48")
        e("s_nop 1")
        for st in ("quad_perm:[1,0,3,2]", "quad_perm:[2,3,0,1]", "row_half_mirror", "row_mirror"):
            e(f"v_add_f32_dpp v11, v11, v11 {st} row_mask:0xf bank_mask:0xf")
            e("s_nop 1")
        e("v_mov_b32 v12, v11")
        e("s_nop 1")
        e("v_permlane16_swap_b32 v11, v12")
        e("s_nop 1")
        e("v_add_f32 v11, v11, v12")
        e("v_rcp_f32 v12, v11")
        e("s_nop 0")
        e("v_mul_f32 v13, v10, v12")
        e("v_fma_f32 v14, -v13, v11, v10")
        e("v_fma_f32 v10, v14, v12, v13")
        e("s_lshl_b32 s30, s3, 2")
        e("s_nop 0")
        for k in range(4):
            e(f"s_add_u32 s31, s30, {k}")
            e(f"v_readlane_b32 s{74+k}, v10, s31")
        e("s_nop 1")
        for j in range(4):
            e(f"v_mul_f32 v{12+j}, s74, v{32+j}")
        for k in range(1, 4):
            for j in range(4):
                e(f"v_fma_f32 v{12+j}, s{74+k}, v{32+4*k+j}, v{12+j}")
        e("s_lshl_b32 s30, s3, 10")
        e(f"s_add_u32 s30, s30, {LDS_O}")
        e("v_add_u32 v6, s30, v5")
        e("ds_write_b128 v6, v[12:15]")
        e("s_waitcnt lgkmcnt(0)")
        e("s_barrier")
        e("s_cmp_gt_u32 s3, 6")
        e("s_cbranch_scc1 L_end")
        e(f"v_add_u32 v6, {LDS_O}, v5")
        for wv in range(8):
            e(f"ds_read_b128 v[{32+4*wv}:{35+4*wv}], v6 offset:{1024*wv}")
        e("s_waitcnt lgkmcnt(0)")
        for wv in range(1, 8):
            for j in range(4):
                e(f"v_add_f32 v{32+j}, v{32+j}, v{32+4*wv+j}")
        e("v_cvt_pk_bf16_f32 v12, v32, v33")
        e("v_cvt_pk_bf16_f32 v13, v34, v35")
        e("s_lshl_b32 s30, s3, 10")
        e(f"s_add_u32 s30, s30, {LDS_PRIV}")
        e("v_lshlrev_b32 v6, 3, v0")
        e("v_add_u32 v6, s30, v6")
        e("ds_write_b64 v6, v[12:13]")
        e("v_lshrrev_b32 v7, 4, v0")
        e("v_lshlrev_b32 v7, 4, v7")
        e("v_add_u32 v7, s30, v7")
        e("s_waitcnt lgkmcnt(0)")
        for s in range(8):
            e(f"ds_read_b128 v[{32+4*s}:{35+4*s}], v7 offset:{64*s}")
        for s in range(8):
            e(f"s_waitcnt lgkmcnt({7-s})")
            for tt in range(2):
                a = (s * 2 + tt) * 4
                d = 16 + 4 * tt
                c = "0" if s == 0 else f"v[{d}:{d+3}]"
                e(f"v_mfma_f32_16x16x32_bf16 v[{d}:{d+3}], a[{a}:{a+3}], v[{32+4*s}:{35+4*s}], {c}")
        e("v_and_b32 v3, 15, v0")
        e("v_cmp_eq_u32 vcc, 1, v3")
        e("v_lshrrev_b32 v4, 4, v0")
        e("v_lshl_add_u32 v4, v3, 2, v4")
        e("s_lshl_b32 s30, s3, 3")
        e("s_and_b32 s31, s69, 1")
        e("s_mul_i32 s31, s31, 56")
        e("s_add_u32 s30, s30, s31")
        e("s_lshl_b32 s30, s30, 4")
        e("s_lshl_b32 s31, s72, 11")
        e("s_add_u32 s30, s30, s31")
        e(f"s_add_u32 s30, s30, {WS_Y}")
        e("v_lshlrev_b32 v4, 4, v4")
        e("v_add_u32 v4, s30, v4")
        e("s_nop 3")
        for j in range(4):
            e(f"v_cndmask_b32 v{16+j}, v{16+j}, v{20+j}, vcc")
        self.pack4(V(24, 4), V(16, 4))
        e("s_mov_b32 s64, 0x00030003")
        e("s_mov_b32 s65, 0x00030003")
        e("s_mov_b64 exec, s[64:65]")
        e("buffer_store_dwordx4 v[24:27], v4, s[16:19], 0 offen sc1")
        e("s_mov_b64 exec, -1")
        self.stamp(7)

    def s3(self):
        e = self.e
        V = lambda a, n: [f"v{a+i}" for i in range(n)]
        e("s_mov_b32 s24, s32")
        e("s_mov_b32 s25, s33")
        e("s_mov_b32 s26, 896")
        e("s_mov_b32 s27, 0x20000")
        e("v_lshlrev_b32 v5, 4, v0")
        e("buffer_load_dwordx4 v[72:75], v5, s[24:27], 0 offen")
        e("s_barrier")
        e("v_bfe_u32 v3, v0, 2, 2")
        e("v_lshrrev_b32 v4, 4, v0")
        e("v_lshl_add_u32 v3, v4, 3, v3")
        e("v_lshlrev_b32 v6, 6, v3")
        e("v_and_b32 v4, 3, v0")
        e("v_lshl_add_u32 v6, v4, 3, v6")
        e("s_and_b32 s30, s3, 1")
        e("s_mul_i32 s30, s30, 28672")
        e("s_bfe_u32 s31, s3, 0x10001")
        e("s_lshl_b32 s31, s31, 5")
        e("s_add_u32 s30, s30, s31")
        e("s_lshr_b32 s31, s3, 2")
        e("s_mul_i32 s31, s31, %d" % (7 * 2048))
        e("s_add_u32 s30, s30, s31")
        e(f"s_add_u32 s30, s30, {LDS_W}")
        e("v_add_u32 v6, s30, v6")
        for s in range(7):
            e(f"ds_read_b64_tr_b16 a[{4*s}:{4*s+1}], v6 offset:{s*2048}")
            e(f"ds_read_b64_tr_b16 a[{4*s+2}:{4*s+3}], v6 offset:{s*2048 + 256}")
        e("v_mul_u32_u24 v7, 0x380, v3")
        e("v_lshl_add_u32 v7, v4, 3, v7")
        e("s_lshl_b32 s30, s3, 7")
        e(f"s_add_u32 s30, s30, {LDS_W + 57344}")
        e("v_add_u32 v7, s30, v7")
        e("s_cmp_gt_u32 s3, 6")
        e("s_cbranch_scc1 L_s3_nogather")
        for t in range(4):
            e(f"ds_read_b64_tr_b16 a[{32+4*t}:{33+4*t}], v7 offset:{t*32}")
            e(f"ds_read_b64_tr_b16 a[{34+4*t}:{35+4*t}], v7 offset:{t*32 + 3584}")
        e("v_lshrrev_b32 v8, 4, v0")
        e("v_lshlrev_b32 v8, 13, v8")
        e("v_and_b32 v9, 15, v0")
        e("v_lshl_add_u32 v8, v9, 4, v8")
        e("s_lshl_b32 s30, s3, 8")
        e(f"s_add_u32 s30, s30, {WS_Y}")
        e("v_add_u32 v8, s30, v8")
        e("v_add_u32 v10, 4096, v8")
        self.poll([(V(32, 4), "v8", 0), (V(36, 4), "v8", 2048), (V(40, 4), "v10", 0), (V(44, 4), "v10", 2048)], "v11")
        self.stamp(6)
        for j in range(4):
            e(f"v_add_f32 v{32+j}, v{32+j}, v{36+j}")
            e(f"v_add_f32 v{40+j}, v{40+j}, v{44+j}")
        for j in range(4):
            e(f"v_add_f32 v{32+j}, v{32+j}, v{40+j}")
        for sw in ("v_permlane16_swap_b32", "v_permlane32_swap_b32"):
            for j in range(4):
                e(f"v_mov_b32 v{36+j}, v{32+j}")
            e("s_nop 1")
            for j in range(4):
                e(f"{sw} v{32+j}, v{36+j}")
            e("s_nop 1")
            for j in range(4):
                e(f"v_add_f32 v{32+j}, v{32+j}, v{36+j}")
        e("s_lshl_b32 s30, s3, 8")
        e(f"s_add_u32 s30, s30, {LDS_A}")
        e("v_lshlrev_b32 v9, 4, v9")
        e("v_add_u32 v9, s30, v9")
        e("s_mov_b64 exec, 0xffff")
        e("ds_write_b128 v9, v[32:35]")
        e("s_mov_b64 exec, -1")
        e("L_s3_nogather:")
        e("s_waitcnt vmcnt(0) lgkmcnt(0)")
        e("s_barrier")
        e("v_lshlrev_b32 v8, 5, v0")
        e(f"v_add_u32 v8, {LDS_A}, v8")
        e("v_cmp_gt_u32 vcc, 56, v0")
        e("v_mov_b32 v22, 0")
        e("v_mov_b32 v23, 1.0")
        e("v_cndmask_b32 v22, v22, v23, vcc")
        for j in range(8):
            e(f"v_mov_b32 v{32+j}, 0")
        e("s_mov_b32 s64, -1")
        e("s_mov_b32 s65, 0x00ffffff")
        e("s_mov_b64 exec, s[64:65]")
        e("ds_read_b128 v[32:35], v8")
        e("ds_read_b128 v[36:39], v8 offset:16")
        e("s_mov_b64 exec, -1")
        self.unpack8(V(48, 8), V(72, 4))
        e("s_waitcnt lgkmcnt(0)")
        for j in range(8):
            self.rne(f"v{32+j}", f"v{32+j}")
        for j in range(8):
            e(f"v_add_f32 v{32+j}, v{32+j}, v{48+j}")
        for j in range(8):
            self.rne(f"v{32+j}", f"v{32+j}")
        self.ln_stats(V(32, 8), "v22", V(40, 6))
        for j in range(8):
            self.ln_apply(f"v{48+j}", f"v{32+j}", V(40, 6), "v46", "v47")
        e("s_mov_b32 s30, 0x07060302")
        for j in range(4):
            e(f"v_perm_b32 v{56+j}, v{49+2*j}, v{48+2*j}, s30")
        e("s_lshl_b32 s31, s3, 10")
        e(f"s_add_u32 s31, s31, {LDS_PRIV}")
        e("v_add_u32 v8, s31, v5")
        e("ds_write_b128 v8, v[56:59]")
        e("v_lshrrev_b32 v9, 4, v0")
        e("v_lshlrev_b32 v9, 4, v9")
        e("s_lshr_b32 s30, s3, 2")
        e("s_mul_i32 s30, s30, 448")
        e("s_add_u32 s30, s30, s31")
        e("v_add_u32 v9, s30, v9")
        e("s_waitcnt lgkmcnt(0)")
        regs = [64, 68, 72, 76, 80, 48, 52]
        for s in range(7):
            e(f"ds_read_b128 v[{regs[s]}:{regs[s]+3}], v9 offset:{64*s}")
        for s in range(7):
            e(f"s_waitcnt lgkmcnt({6-s})")
            c = "0" if s == 0 else "v[16:19]"
            e(f"v_mfma_f32_16x16x32_bf16 v[16:19], a[{4*s}:{4*s+3}], v[{regs[s]}:{regs[s]+3}], {c}")
        e("s_lshr_b32 s30, s3, 2")
        e("s_lshl_b32 s30, s30, 8")
        e("s_and_b32 s31, s3, 1")
        e("s_lshl_b32 s31, s31, 7")
        e("s_add_u32 s30, s30, s31")
        e("s_bfe_u32 s31, s3, 0x10001")
        e("s_lshl_b32 s31, s31, 6")
        e("s_add_u32 s30, s30, s31")
        e(f"s_add_u32 s30, s30, {LDS_GU}")
        e("v_lshrrev_b32 v9, 4, v0")
        e("v_lshlrev_b32 v9, 4, v9")
        e("v_add_u32 v9, s30, v9")
        e("s_mov_b32 s64, 0x00010001")
        e("s_mov_b32 s65, 0x00010001")
        e("s_nop 2")
        e("s_mov_b64 exec, s[64:65]")
        e("ds_write_b128 v9, v[16:19]")
        e("s_mov_b64 exec, -1")
        e("s_waitcnt lgkmcnt(0)")
        e("s_barrier")
        e("s_cmp_gt_u32 s3, 6")
        e("s_cbranch_scc1 L_end")
        e("v_and_b32 v9, 31, v0")
        e("v_lshlrev_b32 v10, 2, v9")
        e(f"v_add_u32 v10, {LDS_GU}, v10")
        e("ds_read_b32 v16, v10")
        e("ds_read_b32 v17, v10 offset:256")
        e("ds_read_b32 v18, v10 offset:128")
        e("ds_read_b32 v19, v10 offset:384")
        e("s_waitcnt lgkmcnt(0)")
        e("v_add_f32 v16, v16, v17")
        e("v_add_f32 v18, v18, v19")
        self.rne("v16", "v16")
        self.rne("v18", "v18")
        e("v_mul_f32 v17, v16, v16")
        e("v_mul_f32 v17, v17, v16")
        e("v_mov_b32 v19, 0x3d372713")
        e("v_fma_f32 v17, v17, v19, v16")
        e("v_mul_f32 v17, 0xc0135761, v17")
        e("v_min_f32 v17, 0x42fc0000, v17")
        e("v_exp_f32 v17, v17")
        e("s_nop 0")
        e("v_add_f32 v17, 1.0, v17")
        e("v_rcp_f32 v19, v17")
        e("s_nop 0")
        e("v_mul_f32 v20, v16, v19")
        e("v_fma_f32 v21, -v20, v17, v16")
        e("v_fma_f32 v21, v21, v19, v20")
        e("v_mov_b32 v20, v21")
        self.rne("v20", "v20")
        e("v_mul_f32 v20, v20, v18")
        e("v_cvt_pk_bf16_f32 v20, v20, v20")
        e("s_lshl_b32 s31, s3, 10")
        e(f"s_add_u32 s31, s31, {LDS_PRIV}")
        e("v_lshlrev_b32 v10, 1, v9")
        e("v_add_u32 v10, s31, v10")
        e("ds_write_b16 v10, v20")
        e("v_lshrrev_b32 v10, 4, v0")
        e("v_lshlrev_b32 v10, 4, v10")
        e("v_add_u32 v10, s31, v10")
        e("s_waitcnt lgkmcnt(0)")
        e("ds_read_b128 v[16:19], v10")
        e("s_waitcnt lgkmcnt(0)")
        for t in range(4):
            e(f"v_mfma_f32_16x16x32_bf16 v[{48+4*t}:{51+4*t}], a[{32+4*t}:{35+4*t}], v[16:19], 0")
        e("v_and_b32 v9, 15, v0")
        e("v_lshrrev_b32 v10, 4, v0")
        e("v_lshl_add_u32 v10, v9, 2, v10")
        e("s_sub_u32 s72, s69, 32")
        e("s_lshl_b32 s30, s72, 11")
        e("s_lshl_b32 s31, s3, 8")
        e("s_add_u32 s30, s30, s31")
        e(f"s_add_u32 s30, s30, {WS_Z}")
        e("v_lshlrev_b32 v10, 4, v10")
        e("v_add_u32 v10, s30, v10")
        e("s_nop 2")
        for t in range(1, 4):
            e(f"v_cmp_eq_u32 vcc, {t}, v9")
            e("s_nop 1")
            for j in range(4):
                e(f"v_cndmask_b32 v{48+j}, v{48+j}, v{48+4*t+j}, vcc")
        self.pack4(V(24, 4), V(48, 4))
        e("s_mov_b32 s64, 0x000f000f")
        e("s_mov_b32 s65, 0x000f000f")
        e("s_mov_b64 exec, s[64:65]")
        e("buffer_store_dwordx4 v[24:27], v10, s[16:19], 0 offen sc1")
        e("s_mov_b64 exec, -1")
        self.stamp(7)
        e("s_cmp_lg_u32 s3, 0")
        e("s_cbranch_scc1 L_end")
        e("v_lshlrev_b32 v8, 11, v0")
        e("s_lshl_b32 s30, s72, 5")
        e(f"s_add_u32 s30, s30, {WS_Z}")
        e("v_add_u32 v8, s30, v8")
        for j in range(8):
            e(f"v_mov_b32 v{48+j}, 0")
        e("s_mov_b32 s64, -1")
        e("s_mov_b32 s65, 0x00ffffff")
        self.poll([(V(48, 4), "v8", 0), (V(52, 4), "v8", 16)], "v11", mask="s[64:65]")
        self.stamp(8)
        self.wave_sum(V(48, 8))
        e("s_nop 0")
        for j in range(8):
            e(f"v_readlane_b32 s{74+j}, v{48+j}, 63")
        e("s_nop 1")
        for j in range(8):
            e(f"v_mov_b32 v{48+j}, s{74+j}")
        for j in range(8):
            self.rne(f"v{48+j}", f"v{48+j}")
        for j in range(8):
            e(f"v_add_f32 v{48+j}, v{48+j}, v{32+j}")
        for j in range(4):
            e(f"v_cvt_pk_bf16_f32 v{56+j}, v{48+2*j}, v{49+2*j}")
        e("s_mov_b32 s24, s50")
        e("s_mov_b32 s25, s51")
        e("s_mov_b32 s26, 896")
        e("s_mov_b32 s27, 0x20000")
        e("v_cmp_eq_u32 vcc, s72, v0")
        e("s_and_saveexec_b64 s[64:65], vcc")
        e("buffer_store_dwordx4 v[56:59], v5, s[24:27], 0 offen")
        e("s_mov_b64 exec, -1")
        e("s_cmp_lg_u32 s72, 0")
        e("s_cbranch_scc1 L_s4_done")
        e("v_mov_b32 v8, s6")
        e("v_mov_b32 v9, 0")
        e("s_mov_b64 exec, 1")
        e("buffer_store_dword v8, v9, s[16:19], 0 offen sc1")
        e("s_mov_b64 exec, -1")
        e("L_s4_done:")
        self.stamp(9)

    def text(self):
        self.build()
        src = HDR + f"; @launch grid=(256,1,1) block=(512,1,1) lds={LDS_TOTAL}\n"
        src += '.amdgcn_target "amdgcn-amd-amdhsa--gfx950"\n.text\n'
        src += f".globl {KERN}\n.p2align 8\n.type {KERN},@function\n{KERN}:\n"
        src += "\n".join(self.o) + "\n"
        nacc = self.NS * 4
        src += f""".section .rodata,"a"
.p2align 6
.amdhsa_kernel {KERN}
  .amdhsa_next_free_vgpr {96 + nacc}
  .amdhsa_next_free_sgpr 100
  .amdhsa_accum_offset 96
  .amdhsa_group_segment_fixed_size 0
  .amdhsa_kernarg_size 96
  .amdhsa_user_sgpr_count 2
  .amdhsa_user_sgpr_kernarg_segment_ptr 1
  .amdhsa_system_sgpr_workgroup_id_x 1
.end_amdhsa_kernel
"""
        return src


if __name__ == "__main__":
    import argparse
    ap = argparse.ArgumentParser()
    ap.add_argument("-o", default="k1.s")
    ap.add_argument("--NS", type=int, default=40)
    ap.add_argument("--W0", type=int, default=6)
    ap.add_argument("--W", type=int, default=6)
    ap.add_argument("--stamps", action="store_true")
    ap.add_argument("--role_all", action="store_true")
    ap.add_argument("--sleep", type=int, default=1)
    a = ap.parse_args()
    g = Gen(NS=a.NS, W0=a.W0, W=a.W, stamps=a.stamps, role_even=not a.role_all, sleep=a.sleep)
    open(a.o, "w").write(g.text())
```

```python
NAME = "sequential_preLN__gqa_block_cached__geglu_ffn__decode"
KERN = NAME + "_kernel"
HDR = open("cdna_kernels/%s.s.ref" % NAME).read().split("; Override launch")[0]

WS_QX = 0x1000
WS_PO = 0x20000
PO_BLK = 1152
WS_Y = 0x100000
WS_Z = 0x110000
WS_STAMP = 64 << 20
WS_SIZE = 512 << 20

LDS_W = 0
LDS_O = 86016
LDS_ML = LDS_O + 16384
LDS_Q = LDS_ML + 128
LDS_H = LDS_Q + 1024
LDS_PRIV = LDS_H + 1024
LDS_GU = LDS_PRIV + 8192
LDS_CS = LDS_GU + 512
LDS_TOTAL = LDS_CS + 512

CEXP = 0x3DB8AA3B
F_INV448 = 0x3B124925
F_448 = 0x43E00000
F_EPS = 0x3727C5AC
POLL_MAX = 0x40000


def V(a, n):
    return [f"v{a+i}" for i in range(n)]


class Gen:
    def __init__(self, NS=40, W0=8, W=6, stamps=False, sleep=1, lds_pad=0, s3_odd=True, dma_late=True, R=0, qsleep=0, warm=True):
        self.o = []
        self.NS, self.W0, self.W = NS, W0, W
        self.stamps = stamps
        self.sleep = sleep
        self.lab = 0
        self.lds_pad = lds_pad
        self.s3_odd = s3_odd
        self.dma_late = dma_late
        self.R = R
        self.warm = warm
        self.trace_n = 2
        self.qsleep = qsleep

    def e(self, s):
        for line in s.strip("\n").split("\n"):
            line = line.strip()
            if not line:
                continue
            self.o.append(line if line.endswith(":") else "    " + line)

    def label(self, p="L"):
        self.lab += 1
        return f"{p}_{self.lab}"

    def stamp(self, k, src=None):
        if not self.stamps:
            return
        if src is None:
            self.e("s_memrealtime s[98:99]")
            self.e("s_waitcnt lgkmcnt(0)")
            self.e(f"s_mov_b32 s{80+k}, s98")
        else:
            self.e(f"s_mov_b32 s{80+k}, {src}")

    def stamp_flush(self):
        if not self.stamps:
            return
        e = self.e
        e("s_mov_b64 exec, -1")
        for k in range(16):
            e(f"v_mov_b32 v{32+k}, s{80+k}")
        e("s_lshl_b32 s30, s2, 3")
        e("s_add_u32 s30, s30, s3")
        e("s_lshl_b32 s30, s30, 6")
        e(f"s_add_u32 s30, s30, {WS_STAMP}")
        e("v_mov_b32 v3, s30")
        e("s_mov_b64 exec, 1")
        for k in range(4):
            e(f"buffer_store_dwordx4 v[{32+4*k}:{35+4*k}], v3, s[16:19], 0 offen offset:{16*k}")

    def rne(self, dst, src):
        self.e(f"v_cvt_pk_bf16_f32 {dst}, {src}, {src}")
        self.e(f"v_lshlrev_b32 {dst}, 16, {dst}")

    def wave_sum(self, regs):
        steps = ["row_shr:1 row_mask:0xf bank_mask:0xf bound_ctrl:0",
                 "row_shr:2 row_mask:0xf bank_mask:0xf bound_ctrl:0",
                 "row_shr:4 row_mask:0xf bank_mask:0xf bound_ctrl:0",
                 "row_shr:8 row_mask:0xf bank_mask:0xf bound_ctrl:0",
                 "row_bcast:15 row_mask:0xa bank_mask:0xf",
                 "row_bcast:31 row_mask:0xc bank_mask:0xf"]
        n = len(regs)
        if n < 3:
            self.e("s_nop 1")
        for st in steps:
            for r in regs:
                self.e(f"v_add_f32_dpp {r}, {r}, {r} {st}")
            if n == 1:
                self.e("s_nop 1")
            elif n == 2:
                self.e("s_nop 0")

    def pack4(self, w, v):
        self.e(f"v_perm_b32 {w[0]}, {v[0]}, {v[3]}, s58")
        self.e(f"v_perm_b32 {w[1]}, {v[1]}, {v[3]}, s59")
        self.e(f"v_perm_b32 {w[2]}, {v[2]}, {v[3]}, s60")
        self.e(f"v_xor_b32 {w[3]}, s6, {w[0]}")
        self.e(f"v_xor_b32 {w[3]}, {w[3]}, {w[1]}")
        self.e(f"v_xor_b32 {w[3]}, {w[3]}, {w[2]}")

    def pack_dw(self, out, v, tmp, selv, vtag, m3):
        e = self.e
        e(f"v_mov_b32_dpp {tmp}, {v} quad_perm:[3,3,3,3] row_mask:0xf bank_mask:0xf")
        e(f"v_perm_b32 {out}, {v}, {tmp}, {selv}")
        e(f"v_cndmask_b32 {out}, {out}, {vtag}, {m3}")
        e("s_nop 1")
        e(f"v_xor_b32_dpp {tmp}, {out}, {out} quad_perm:[1,0,3,2] row_mask:0xf bank_mask:0xf")
        e("s_nop 1")
        e(f"v_xor_b32_dpp {tmp}, {tmp}, {tmp} quad_perm:[2,3,0,1] row_mask:0xf bank_mask:0xf")
        e(f"v_cndmask_b32 {out}, {out}, {tmp}, {m3}")

    def pack_dw_consts(self, selv, vtag, m3lo):
        e = self.e
        e(f"v_and_b32 {selv}, 3, v0")
        e(f"v_add_u32 {selv}, 0x07060501, {selv}")
        e(f"v_mov_b32 {vtag}, s6")
        e(f"s_mov_b32 s{m3lo}, 0x88888888")
        e(f"s_mov_b32 s{m3lo+1}, 0x88888888")

    def unpack4(self, w):
        self.e(f"v_perm_b32 {w[3]}, {w[1]}, {w[0]}, s61")
        self.e(f"v_perm_b32 {w[3]}, {w[2]}, {w[3]}, s62")

    def poll(self, loads, bad, mask=None, unpack=True):
        e = self.e
        lp = self.label("Lpoll")
        dn = self.label("Lpdone")
        e("s_mov_b32 s7, 0")
        if mask is not None:
            e(f"s_mov_b64 exec, {mask}")
        e(f"{lp}:")
        for regs, va, off in loads:
            r0 = int(regs[0][1:])
            e(f"buffer_load_dwordx4 v[{r0}:{r0+3}], {va}, s[16:19], 0 offen offset:{off} sc1")
        n = len(loads)
        for k, (regs, va, off) in enumerate(loads):
            e(f"s_waitcnt vmcnt({n - 1 - k})")
            w = regs
            e(f"v_xor_b32 {w[3]}, {w[3]}, {w[0]}")
            e(f"v_xor_b32 {bad if k == 0 else bad + '_t'}, {w[1]}, {w[2]}".replace(bad + "_t", self.badt))
            if k == 0:
                e(f"v_xor_b32 {w[3]}, s6, {w[3]}")
                e(f"v_xor_b32 {bad}, {bad}, {w[3]}")
            else:
                e(f"v_xor_b32 {w[3]}, s6, {w[3]}")
                e(f"v_xor_b32 {w[3]}, {w[3]}, {self.badt}")
                e(f"v_or_b32 {bad}, {bad}, {w[3]}")
        e(f"v_cmp_ne_u32 vcc, 0, {bad}")
        e("s_add_u32 s7, s7, 1")
        e(f"s_cbranch_vccz {dn}")
        e(f"s_cmp_gt_u32 s7, 0x{POLL_MAX:x}")
        e(f"s_cbranch_scc1 {dn}")
        if self.sleep:
            e(f"s_sleep {self.sleep}")
        e(f"s_branch {lp}")
        e(f"{dn}:")
        if unpack:
            for regs, va, off in loads:
                self.unpack4(regs)
        if mask is not None:
            e("s_mov_b64 exec, -1")

    def poll_pipe(self, loads, bad, mask=None, unpack=True, R=4, abase=64):
        e = self.e
        n = len(loads)
        lp = self.label("Lpp")
        dn = self.label("Lppdone")

        def issue(j):
            for k, (regs, va, off) in enumerate(loads):
                a = abase + (j * n + k) * 4
                e(f"buffer_load_dwordx4 a[{a}:{a+3}], {va}, s[16:19], 0 offen offset:{off} sc1")

        e("s_mov_b32 s7, 0")
        if mask is not None:
            e(f"s_mov_b64 exec, {mask}")
        for j in range(R - 1):
            issue(j)
        e(f"{lp}:")
        for j in range(R):
            issue((j + R - 1) % R)
            for k, (regs, va, off) in enumerate(loads):
                e(f"s_waitcnt vmcnt({(R - 1) * n + n - 1 - k})")
                a = abase + (j * n + k) * 4
                w = regs
                for i in range(4):
                    e(f"v_accvgpr_read_b32 {w[i]}, a{a+i}")
                tgt = bad if k == 0 else self.badt
                e(f"v_xor_b32 {tgt}, {w[1]}, {w[2]}")
                e(f"v_xor_b32 {w[3]}, {w[3]}, {w[0]}")
                e(f"v_xor_b32 {w[3]}, s6, {w[3]}")
                if k == 0:
                    e(f"v_xor_b32 {bad}, {bad}, {w[3]}")
                else:
                    e(f"v_xor_b32 {w[3]}, {w[3]}, {self.badt}")
                    e(f"v_or_b32 {bad}, {bad}, {w[3]}")
            e(f"v_cmp_ne_u32 vcc, 0, {bad}")
            e("s_add_u32 s7, s7, 1")
            e(f"s_cbranch_vccz {dn}")
        e(f"s_cmp_gt_u32 s7, 0x{POLL_MAX:x}")
        e(f"s_cbranch_scc0 {lp}")
        e(f"{dn}:")
        if unpack:
            for regs, va, off in loads:
                self.unpack4(regs)
        if mask is not None:
            e("s_mov_b64 exec, -1")

    def poll_masked(self, loads, sbase, mask=None, unpack=True, sleep=None, presleep=0, trace=False):
        e = self.e
        n = len(loads)
        lp = self.label("Lpm")
        dn = self.label("Lpmdone")
        sm = [f"s[{sbase+2*k}:{sbase+2*k+1}]" for k in range(n)]
        e("s_mov_b32 s7, 0")
        for k in range(n):
            e(f"s_mov_b64 {sm[k]}, {mask if mask is not None else -1}")
        if presleep:
            e(f"s_sleep {presleep}")
        e(f"{lp}:")
        for k, (regs, va, off) in enumerate(loads):
            sk = self.label("Lsk")
            r0 = int(regs[0][1:])
            e(f"s_cmp_eq_u64 {sm[k]}, 0")
            e(f"s_cbranch_scc1 {sk}")
            e(f"s_mov_b64 exec, {sm[k]}")
            e(f"buffer_load_dwordx4 v[{r0}:{r0+3}], {va}, s[16:19], 0 offen offset:{off} sc1")
            e(f"{sk}:")
        e("s_waitcnt vmcnt(0)")
        if trace and self.stamps:
            e("s_memrealtime s[98:99]")
            for k in range(5):
                e(f"s_mov_b32 s{80+k}, s{81+k}")
            e("s_waitcnt lgkmcnt(0)")
            e("s_mov_b32 s85, s98")
        for k, (regs, va, off) in enumerate(loads):
            w = regs
            e(f"s_mov_b64 exec, {sm[k]}")
            e(f"v_xor_b32 {self.badt}, {w[1]}, {w[2]}")
            e(f"v_xor_b32 {w[3]}, {w[3]}, {w[0]}")
            e(f"v_xor_b32 {self.badt}, s6, {self.badt}")
            e(f"v_cmp_ne_u32 {sm[k]}, {w[3]}, {self.badt}")
        e("s_add_u32 s7, s7, 1")
        e(f"s_mov_b64 vcc, {sm[0]}")
        for k in range(1, n):
            e(f"s_or_b64 vcc, vcc, {sm[k]}")
        e("s_cmp_eq_u64 vcc, 0")
        e(f"s_cbranch_scc1 {dn}")
        e(f"s_cmp_gt_u32 s7, 0x{POLL_MAX:x}")
        e(f"s_cbranch_scc1 {dn}")
        sl = self.sleep if sleep is None else sleep
        if sl:
            e(f"s_sleep {sl}")
        e(f"s_branch {lp}")
        e(f"{dn}:")
        e(f"s_mov_b64 exec, {mask if mask is not None else -1}")
        if unpack:
            for regs, va, off in loads:
                self.unpack4(regs)
        e("s_mov_b64 exec, -1")

    def rpoll(self, loads, bad, mask=None, unpack=True):
        if self.R == 0:
            return self.poll_masked(loads, 32, mask, unpack, trace=(len(loads) == self.trace_n))
        if self.R > 1:
            self.poll_pipe(loads, bad, mask, unpack, R=self.R)
        else:
            self.poll(loads, bad, mask, unpack)

    def div448(self, dst, s, a, b):
        e = self.e
        e(f"v_mov_b32 {a}, {s}")
        e(f"v_mul_f32 {dst}, 0x{F_INV448:08x}, {a}")
        e(f"v_mov_b32 {b}, 0x{F_448:08x}")
        e(f"v_fma_f32 {a}, -{dst}, {b}, {a}")
        e(f"v_mov_b32 {b}, 0x{F_INV448:08x}")
        e(f"v_fma_f32 {dst}, {a}, {b}, {dst}")

    def ln_stats(self, f, vm, t):
        e = self.e
        e(f"v_add_f32 {t[0]}, {f[0]}, {f[1]}")
        e(f"v_add_f32 {t[1]}, {f[2]}, {f[3]}")
        e(f"v_add_f32 {t[2]}, {f[4]}, {f[5]}")
        e(f"v_add_f32 {t[3]}, {f[6]}, {f[7]}")
        e(f"v_add_f32 {t[0]}, {t[0]}, {t[1]}")
        e(f"v_add_f32 {t[2]}, {t[2]}, {t[3]}")
        e(f"v_add_f32 {t[0]}, {t[0]}, {t[2]}")
        self.wave_sum([t[0]])
        e(f"v_readlane_b32 s30, {t[0]}, 63")
        e("s_nop 1")
        self.div448(t[4], "s30", t[3], t[5])
        e(f"v_sub_f32 {t[0]}, {f[0]}, {t[4]}")
        e(f"v_mul_f32 {t[1]}, {t[0]}, {t[0]}")
        for i in range(1, 8):
            e(f"v_sub_f32 {t[0]}, {f[i]}, {t[4]}")
            e(f"v_fma_f32 {t[1]}, {t[0]}, {t[0]}, {t[1]}")
        e(f"v_mul_f32 {t[1]}, {t[1]}, {vm}")
        self.wave_sum([t[1]])
        e(f"v_readlane_b32 s30, {t[1]}, 63")
        e("s_nop 1")
        self.div448(t[2], "s30", t[3], t[5])
        self.rne(t[0], t[4])
        self.rne(t[2], t[2])
        e(f"v_add_f32 {t[2]}, 0x{F_EPS:08x}, {t[2]}")
        self.rne(t[2], t[2])
        e(f"v_sqrt_f32 {t[1]}, {t[2]}")
        e("s_nop 0")
        self.rne(t[1], t[1])
        e(f"v_rcp_f32 {t[2]}, {t[1]}")
        e("s_nop 0")

    def ln_apply(self, dst, x, t, a, b):
        e = self.e
        e(f"v_sub_f32 {a}, {x}, {t[0]}")
        self.rne(a, a)
        e(f"v_mul_f32 {b}, {a}, {t[2]}")
        e(f"v_fma_f32 {a}, -{b}, {t[1]}, {a}")
        e(f"v_fma_f32 {b}, {a}, {t[2]}, {b}")
        self.rne(dst, b)

    def unpack8(self, f, src):
        for i in range(4):
            self.e(f"v_lshlrev_b32 {f[2*i]}, 16, {src[i]}")
            self.e(f"v_and_b32 {f[2*i+1]}, 0xffff0000, {src[i]}")

    def xsum(self, regs, tmps, op="v_add_f32", swaps=("v_permlane16_swap_b32", "v_permlane32_swap_b32")):
        e = self.e
        for sw in swaps:
            for r, t in zip(regs, tmps):
                e(f"v_mov_b32 {t}, {r}")
            if len(regs) < 3:
                e("s_nop 1")
            for r, t in zip(regs, tmps):
                e(f"{sw} {r}, {t}")
            if len(regs) < 3:
                e("s_nop 1")
            for r, t in zip(regs, tmps):
                e(f"{op} {r}, {r}, {t}")

    def tag(self):
        self.e("s_mul_i32 s6, s6, 0x9E3779B1")
        self.e("s_add_u32 s6, s6, 0x7F4A7C15")
        self.e("s_or_b32 s6, s6, 1")

    def srd(self, base, p, size):
        e = self.e
        e(f"s_mov_b32 s{base}, s{p}")
        e(f"s_mov_b32 s{base+1}, s{p+1}")
        e(f"s_mov_b32 s{base+2}, 0x{size:x}")
        e(f"s_mov_b32 s{base+3}, 0x20000")

    def stream_load(self, i):
        n, half = (i % 64) >> 1, i & 1
        off = n * 2048 + half * 256
        hi, lo = off & ~4095, off & 4095
        if self.cur_so != hi:
            self.e(f"s_add_u32 s29, s28, {hi}")
            self.cur_so = hi
        slot = (i % self.NS) * 4
        srd, vo = ("s[8:11]", "v1") if i < 64 else ("s[12:15]", "v2")
        self.e(f"buffer_load_dwordx4 a[{slot}:{slot+3}], {vo}, {srd}, s29 offen offset:{lo} nt")

    def slot(self, i):
        s = (i % self.NS) * 4
        return f"a[{s}:{s+3}]"

    def build(self):
        e = self.e
        NS, W0, W = self.NS, self.W0, self.W
        self.cur_so = None
        self.badt = "v95"
        if self.stamps:
            e("s_memrealtime s[96:97]")
            for k in range(16):
                e(f"s_mov_b32 s{80+k}, 0")
        e("s_cmp_ge_u32 s2, 256")
        e("s_cbranch_scc1 L_exit")
        e("s_load_dwordx16 s[32:47], s[0:1], 0")
        e("s_load_dwordx8 s[48:55], s[0:1], 64")
        e("v_lshrrev_b32 v3, 6, v0")
        e("v_and_b32 v0, 63, v0")
        e("s_and_b32 s4, s2, 7")
        e("v_readfirstlane_b32 s3, v3")
        e("s_lshr_b32 s5, s2, 3")
        e("v_bfe_u32 v1, v0, 2, 2")
        e("v_lshlrev_b32 v1, 9, v1")
        e("v_lshrrev_b32 v4, 4, v0")
        e("v_lshl_add_u32 v1, v4, 6, v1")
        e("v_and_b32 v5, 3, v0")
        e("v_lshl_add_u32 v1, v5, 4, v1")
        e("v_and_b32 v5, 15, v0")
        e("v_lshlrev_b32 v2, 4, v5")
        e("v_lshl_add_u32 v2, v4, 9, v2")
        e("s_lshl_b32 s28, s4, 24")
        e("s_lshl_b32 s30, s5, 19")
        e("s_add_u32 s28, s28, s30")
        e("s_lshl_b32 s30, s3, 16")
        e("s_add_u32 s28, s28, s30")
        e("s_cmp_lg_u32 s3, 0")
        e("s_waitcnt lgkmcnt(0)")
        self.srd(8, 34, 0x8000000)
        e("s_cbranch_scc1 L_pref")
        self.srd(20, 32, 896)
        self.srd(24, 38, 3670016)
        e("v_lshlrev_b32 v6, 4, v0")
        e("v_lshrrev_b32 v7, 3, v0")
        e("v_lshlrev_b32 v3, 13, v7")
        e("v_and_b32 v5, 7, v0")
        e("v_lshl_add_u32 v3, v5, 4, v3")
        e("s_and_b32 s72, s5, 3")
        e("s_lshr_b32 s73, s5, 2")
        e(f"s_mul_i32 s74, s72, {112*8192}")
        e("s_lshl_b32 s30, s4, 10")
        e("s_add_u32 s74, s74, s30")
        e("s_lshl_b32 s30, s73, 7")
        e("s_add_u32 s74, s74, s30")
        e("buffer_load_dwordx4 v[16:19], v6, s[20:23], 0 offen")
        for i in range(14):
            e(f"s_add_u32 s30, s74, {i*65536}")
            e(f"buffer_load_dwordx4 v[{32+4*i}:{35+4*i}], v3, s[24:27], s30 offen")
        e("s_load_dword s6, s[54:55], 0")
        for i in range(W0):
            self.stream_load(i)
        self.common_consts()
        self.stamp(14, "s96")
        self.stamp(0)
        e("v_cmp_gt_u32 vcc, 56, v0")
        e("v_mov_b32 v22, 0")
        e("v_mov_b32 v23, 1.0")
        e("v_cndmask_b32 v22, v22, v23, vcc")
        e(f"s_waitcnt vmcnt({14 + W0})")
        f = V(8, 8)
        self.unpack8(f, V(16, 4))
        self.ln_stats(f, "v22", V(88, 6))
        for j in range(8):
            self.ln_apply(f[j], f[j], V(88, 6), "v94", "v95")
        e("s_mov_b32 s30, 0x07060302")
        for j in range(4):
            e(f"v_perm_b32 v{4+j}, v{9+2*j}, v{8+2*j}, s30")
        e("v_lshlrev_b32 v24, 4, v0")
        e(f"v_add_u32 v24, {LDS_PRIV}, v24")
        e("ds_write_b128 v24, v[4:7]")
        e("s_mul_i32 s30, s72, 224")
        e(f"s_add_u32 s30, s30, {LDS_PRIV}")
        e("v_lshrrev_b32 v3, 3, v0")
        e("v_lshlrev_b32 v3, 1, v3")
        e("v_add_u32 v3, s30, v3")
        e("s_waitcnt lgkmcnt(0)")
        for i in range(14):
            e(f"ds_read_u16 v{16+i}, v3 offset:{16*i}")
        self.tag()
        for i in range(14):
            e(f"s_waitcnt vmcnt({13 - i + W0}) lgkmcnt({13 - i})")
            e(f"v_lshlrev_b32 v{30+(i&1)}, 16, v{16+i}")
            for d in range(4):
                w = 32 + 4 * i + d
                e(f"v_dot2_f32_bf16 v{8+2*d}, v{w}, v{16+i}, {'0' if i == 0 else 'v%d' % (8+2*d)}")
                e(f"v_dot2_f32_bf16 v{9+2*d}, v{w}, v{30+(i&1)}, {'0' if i == 0 else 'v%d' % (9+2*d)}")
        self.stamp(10)
        e("s_nop 2")
        for j in range(8):
            e(f"v_add_f32_dpp v{8+j}, v{8+j}, v{8+j} row_ror:8 row_mask:0xf bank_mask:0xf")
        self.xsum(V(8, 8), V(16, 8))
        for j in range(8):
            e(f"v_add_u32 v{8+j}, 0x80, v{8+j}")
        e("s_mov_b32 s64, 0xff00ff00")
        e("s_mov_b32 s65, 0xff00ff00")
        for j in range(4):
            e(f"v_cndmask_b32 v{8+j}, v{8+j}, v{12+j}, s[64:65]")
        self.pack4(V(32, 4), V(8, 4))
        e("s_lshl_b32 s30, s4, 13")
        e(f"s_add_u32 s75, s30, {WS_QX}")
        e("s_lshl_b32 s30, s72, 11")
        e("s_lshl_b32 s31, s73, 8")
        e("s_add_u32 s30, s30, s31")
        e("s_add_u32 s30, s30, s75")
        e("v_lshlrev_b32 v4, 4, v0")
        e("v_add_u32 v4, s30, v4")
        self.srd(16, 54, WS_SIZE)
        e("s_mov_b64 exec, 0xffff")
        e("buffer_store_dwordx4 v[32:35], v4, s[16:19], 0 offen sc1")
        e("s_mov_b64 exec, -1")
        self.stamp(1)
        e("v_lshlrev_b32 v3, 4, v0")
        e("v_add_u32 v4, s75, v3")
        e("v_add_u32 v5, 4096, v4")
        loads = []
        for b in range(4):
            for i in range(2):
                loads.append((V(40 + 8 * b + 4 * i, 4), "v4" if b < 2 else "v5", (b & 1) * 2048 + i * 1024))
        if self.R == 0:
            self.poll_masked(loads, 64, presleep=self.qsleep)
        else:
            self.poll(loads, "v6")
        self.stamp(13)
        for b in range(4):
            for i in range(2):
                for j in range(3):
                    e(f"v_and_b32 v{40+8*b+4*i+j}, 0xffffff00, v{40+8*b+4*i+j}")
        for k in range(8):
            e(f"v_add_f32 v{40+k}, v{40+k}, v{48+k}")
            e(f"v_add_f32 v{56+k}, v{56+k}, v{64+k}")
        for k in range(8):
            e(f"v_add_f32 v{40+k}, v{40+k}, v{56+k}")
        for k in range(4):
            e(f"v_cvt_pk_bf16_f32 v{48+k}, v{40+2*k}, v{41+2*k}")
        e("v_lshrrev_b32 v3, 4, v0")
        e("v_lshlrev_b32 v3, 7, v3")
        e("v_and_b32 v4, 7, v0")
        e("v_lshl_add_u32 v3, v4, 4, v3")
        e("v_bfe_u32 v4, v0, 3, 1")
        e("v_lshl_add_u32 v3, v4, 3, v3")
        e(f"v_add_u32 v3, {LDS_Q}, v3")
        e("ds_write_b64 v3, v[48:49]")
        e("ds_write_b64 v3, v[50:51] offset:512")
        self.srd(12, 36, 0x8000000)
        for i in range(W0, NS):
            self.stream_load(i)
        e("s_branch L_qready")
        e("L_pref:")
        self.cur_so = None
        for i in range(W0):
            self.stream_load(i)
        e("s_load_dword s6, s[54:55], 0")
        self.srd(12, 36, 0x8000000)
        self.srd(16, 54, WS_SIZE)
        self.common_consts()
        self.stamp(14, "s96")
        self.stamp(0)
        for i in range(W0, NS):
            e(f"s_waitcnt vmcnt({W - 1})")
            self.stream_load(i)
        e("s_waitcnt lgkmcnt(0)")
        self.tag()
        e("L_qready:")
        e("v_and_b32 v5, 1, v0")
        e("v_mov_b32 v6, 0xffff")
        e("v_lshlrev_b32 v5, 4, v5")
        e("v_lshlrev_b32 v6, v5, v6")
        e("v_bfe_u32 v7, v0, 1, 2")
        for jj in range(4):
            e(f"v_cmp_eq_u32 vcc, {jj}, v7")
            e("s_nop 1")
            e(f"v_cndmask_b32 v{64+jj}, 0, v6, vcc")
        e("v_mov_b32 v84, 0xff800000")
        e("v_bfe_u32 v3, v0, 3, 1")
        e("v_lshlrev_b32 v3, 9, v3")
        e("v_lshrrev_b32 v4, 4, v0")
        e("v_lshl_add_u32 v3, v4, 6, v3")
        e("v_and_b32 v5, 3, v0")
        e("v_lshl_add_u32 v3, v5, 4, v3")
        e(f"v_add_u32 v3, {LDS_Q}, v3")
        e("s_waitcnt lgkmcnt(0)")
        e("s_barrier")
        self.stamp(2)
        e("ds_read_b128 v[8:11], v3")
        e("ds_read_b128 v[12:15], v3 offset:256")
        e("v_lshrrev_b32 v4, 5, v0")
        e("v_lshlrev_b32 v88, 10, v4")
        e("v_and_b32 v5, 15, v0")
        e("v_lshl_add_u32 v88, v5, 5, v88")
        e("v_bfe_u32 v5, v0, 4, 1")
        e("v_lshl_add_u32 v88, v5, 4, v88")
        e("s_lshl_b32 s30, s3, 11")
        e(f"s_add_u32 s30, s30, {LDS_O}")
        e("v_add_u32 v88, s30, v88")
        e("v_bfe_u32 v5, v0, 3, 1")
        e("v_lshlrev_b32 v89, 6, v5")
        e("s_lshl_b32 s30, s3, 3")
        e(f"s_add_u32 s30, s30, {LDS_ML}")
        e("v_add_u32 v89, s30, v89")
        e("s_lshr_b32 s69, s4, 1")
        e("s_lshl_b32 s30, s5, 2")
        e("s_add_u32 s69, s69, s30")
        e("s_mov_b32 s68, 0")
        e("s_and_b32 s30, s4, 1")
        if self.s3_odd:
            e("s_cmp_eq_u32 s30, 0")
            e("s_cselect_b32 s31, 64, 56")
            e("s_cselect_b32 s30, 1, 2")
            e("s_cmp_lt_u32 s69, s31")
            e("s_cselect_b32 s68, s30, 0")
        else:
            lab = self.label("Lrole")
            e("s_cmp_eq_u32 s30, 0")
            e(f"s_cbranch_scc0 {lab}")
            e("s_cmp_lt_u32 s69, 120")
            e("s_cselect_b32 s68, 2, 0")
            e("s_cmp_lt_u32 s69, 64")
            e("s_cselect_b32 s68, 1, s68")
            e("s_cmp_eq_u32 s68, 2")
            e("s_cselect_b32 s30, 64, 0")
            e("s_sub_u32 s69, s69, s30")
            e(f"{lab}:")
        e("s_waitcnt lgkmcnt(0)")

        issued = NS

        def post_k(n):
            d = 16 + (n % 4) * 4
            t = 32 + n
            e(f"v_mov_b32_dpp v{t}, v{d} quad_perm:[0,0,0,0] row_mask:0xf bank_mask:0xf")
            e(f"v_add_f32_dpp v{t}, v{d+1}, v{t} quad_perm:[1,1,1,1] row_mask:0xf bank_mask:0xf")
            e(f"v_add_f32_dpp v{t}, v{d+2}, v{t} quad_perm:[2,2,2,2] row_mask:0xf bank_mask:0xf")
            e(f"v_add_f32_dpp v{t}, v{d+3}, v{t} quad_perm:[3,3,3,3] row_mask:0xf bank_mask:0xf")
            e(f"v_max_f32 v84, v84, v{t}")

        for n in range(32):
            i = 2 * n
            e(f"s_waitcnt vmcnt({issued - i - 2})")
            d = 16 + (n % 4) * 4
            e(f"v_mfma_f32_16x16x32_bf16 v[{d}:{d+3}], {self.slot(i)}, v[8:11], 0")
            e(f"v_mfma_f32_16x16x32_bf16 v[{d}:{d+3}], {self.slot(i+1)}, v[12:15], v[{d}:{d+3}]")
            for k in range(2):
                if issued < 128:
                    self.stream_load(issued)
                    issued += 1
            if n >= 2:
                post_k(n - 2)
        e("s_nop 7")
        post_k(30)
        post_k(31)
        self.stamp(3)
        self.xsum(["v84"], ["v85"], op="v_max_f32")
        self.rne("v84", "v84")
        e("v_mov_b32 v86, 0")
        e("v_mov_b32 v87, 0")
        for m in range(16):
            a, b = 32 + 2 * m, 33 + 2 * m
            e(f"v_cvt_pk_bf16_f32 v85, v{a}, v{b}")
            e(f"v_lshlrev_b32 v{a}, 16, v85")
            e(f"v_and_b32 v{b}, 0xffff0000, v85")
            e(f"v_sub_f32 v{a}, v{a}, v84")
            e(f"v_sub_f32 v{b}, v{b}, v84")
            e(f"v_mul_f32 v{a}, s63, v{a}")
            e(f"v_mul_f32 v{b}, s63, v{b}")
            e(f"v_exp_f32 v{a}, v{a}")
            e(f"v_exp_f32 v{b}, v{b}")
            e("s_nop 0")
            e(f"v_add_f32 v86, v86, v{a}")
            e(f"v_add_f32 v87, v87, v{b}")
        e("v_add_f32 v86, v86, v87")
        self.xsum(["v86"], ["v85"])
        e("v_mov_b32 v90, v84")
        e("v_mov_b32 v91, v86")
        e("s_mov_b64 exec, 0x101")
        e("ds_write_b64 v89, v[90:91]")
        e("s_mov_b64 exec, -1")

        def build_a(n):
            a = 68 + (n % 2) * 4
            e(f"v_cvt_pk_bf16_f32 v85, v{32+n}, v{32+n}")
            for jj in range(4):
                e(f"v_and_b32 v{a+jj}, v85, v{64+jj}")

        build_a(0)
        for n in range(32):
            i = 64 + 2 * n
            if n + 1 < 32:
                build_a(n + 1)
            e(f"s_waitcnt vmcnt({issued - i - 2})")
            a = 68 + (n % 2) * 4
            c0 = "0" if n == 0 else "v[76:79]"
            c1 = "0" if n == 0 else "v[80:83]"
            e(f"v_mfma_f32_16x16x32_bf16 v[76:79], v[{a}:{a+3}], {self.slot(i)}, {c0}")
            e(f"v_mfma_f32_16x16x32_bf16 v[80:83], v[{a}:{a+3}], {self.slot(i+1)}, {c1}")
            for k in range(2):
                if issued < 128:
                    self.stream_load(issued)
                    issued += 1
        self.stamp(4)
        e("v_lshlrev_b32 v3, 4, v0")
        e("s_lshl_b32 s30, s3, 10")
        e(f"s_add_u32 s31, s30, {LDS_O}")
        e("v_add_u32 v4, s31, v3")
        e("s_lshl_b32 s30, s3, 6")
        e(f"s_add_u32 s30, s30, {LDS_ML}")
        e("v_mov_b32 v5, s30")
        e("s_nop 1")
        e("ds_write_b128 v88, v[76:79]")
        e("ds_write_b128 v88, v[80:83] offset:512")
        if not self.dma_late:
            self.role_dma()
        e("s_waitcnt lgkmcnt(0)")
        e("s_barrier")
        e("s_cmp_gt_u32 s3, 1")
        e("s_cbranch_scc1 L_pub_done")
        for k in range(4):
            e(f"ds_read_b128 v[{16+4*k}:{19+4*k}], v5 offset:{16*k}")
        for wv in range(8):
            e(f"ds_read_b128 v[{32+4*wv}:{35+4*wv}], v4 offset:{2048*wv}")
        e("s_lshl_b32 s30, s4, 1")
        e("s_add_u32 s30, s30, s3")
        e("s_lshl_b32 s30, s30, 5")
        e("s_add_u32 s30, s30, s5")
        e(f"s_mul_i32 s31, s30, {PO_BLK}")
        e(f"s_add_u32 s31, s31, {WS_PO}")
        e("v_add_u32 v4, s31, v3")
        e("s_waitcnt lgkmcnt(8)")
        e("v_max3_f32 v8, v16, v18, v20")
        e("v_max3_f32 v9, v22, v24, v26")
        e("v_max3_f32 v8, v8, v28, v30")
        e("v_max_f32 v8, v8, v9")
        for wv in range(8):
            e(f"v_sub_f32 v{16+2*wv}, v{16+2*wv}, v8")
        for wv in range(8):
            e(f"v_mul_f32 v{16+2*wv}, s63, v{16+2*wv}")
        for wv in range(8):
            e(f"v_exp_f32 v{16+2*wv}, v{16+2*wv}")
        e("s_waitcnt lgkmcnt(0)")
        for j in range(4):
            e(f"v_mul_f32 v{12+j}, v16, v{32+j}")
        e("v_mul_f32 v9, v16, v17")
        for wv in range(1, 8):
            for j in range(4):
                e(f"v_fma_f32 v{12+j}, v{16+2*wv}, v{32+4*wv+j}, v{12+j}")
            e(f"v_fma_f32 v9, v{16+2*wv}, v{17+2*wv}, v9")
        self.pack4(V(64, 4), V(12, 4))
        e("buffer_store_dwordx4 v[64:67], v4, s[16:19], 0 offen sc1")
        e("v_mov_b32 v10, 0")
        self.pack4(V(68, 4), ["v9", "v10", "v10", "v8"])
        e("s_mov_b64 exec, 1")
        e("buffer_store_dwordx4 v[68:71], v4, s[16:19], 0 offen offset:1024 sc1")
        e("s_mov_b64 exec, -1")
        e("L_pub_done:")
        self.stamp(5)
        e("s_cmp_eq_u32 s68, 0")
        e("s_cbranch_scc1 L_end")
        if self.dma_late:
            self.role_dma()
        e("s_cmp_eq_u32 s68, 2")
        e("s_cbranch_scc1 L_s3")
        self.s2()
        e("s_branch L_end")
        e("L_s3:")
        self.s3()
        e("L_end:")
        self.stamp_flush()
        e("L_exit:")
        e("s_endpgm")

    def common_consts(self):
        e = self.e
        e("s_mov_b32 s58, 0x07060501")
        e("s_mov_b32 s59, 0x07060502")
        e("s_mov_b32 s60, 0x07060503")
        e("s_mov_b32 s61, 0x0c04000c")
        e("s_mov_b32 s62, 0x04020100")
        e(f"s_mov_b32 s63, 0x{CEXP:08x}")

    def role_dma(self):
        e = self.e
        done = self.label("Ldma_done")
        s3l = self.label("Ldma_s3")
        e("s_cmp_eq_u32 s68, 0")
        e(f"s_cbranch_scc1 {done}")
        e("s_lshl_b32 s30, s3, 6")
        e("v_add_u32 v10, s30, v0")
        e("s_lshl_b32 s71, s3, 10")
        e("s_cmp_eq_u32 s68, 2")
        e(f"s_cbranch_scc1 {s3l}")
        self.srd(20, 40, 3670016)
        e("s_lshr_b32 s30, s69, 2")
        e(f"s_mul_i32 s30, s30, {256 * 896}")
        e("s_and_b32 s31, s69, 3")
        e("s_mul_i32 s31, s31, 224")
        e("s_add_u32 s70, s30, s31")
        e("s_movk_i32 s31, 18725")
        for t in range(7):
            e(f"v_add_u32 v11, {t*512}, v10")
            e("v_mul_lo_u32 v12, v11, s31")
            e("v_lshrrev_b32 v12, 18, v12")
            e("v_mul_u32_u24 v13, 14, v12")
            e("v_sub_u32 v13, v11, v13")
            e("v_mul_u32_u24 v12, 0x380, v12")
            e("v_lshl_add_u32 v12, v13, 4, v12")
            e(f"s_add_u32 m0, s71, {LDS_W + t*8192}")
            e("s_nop 0")
            e("buffer_load_dwordx4 v12, s[20:23], s70 offen nt lds")
        e(f"s_branch {done}")
        e(f"{s3l}:")
        e("v_lshrrev_b32 v11, 2, v10")
        e("v_mul_u32_u24 v11, 0xe00, v11")
        e("v_and_b32 v12, 3, v10")
        e("v_lshl_add_u32 v11, v12, 4, v11")
        e("s_lshl_b32 s70, s69, 6")
        for mtx, p in ((0, 44), (1, 46)):
            self.srd(20, p, 1605632)
            for t in range(4):
                lab = None
                if t == 3:
                    lab = self.label("Lskip")
                    e("s_cmp_gt_u32 s3, 3")
                    e(f"s_cbranch_scc1 {lab}")
                e(f"s_add_u32 s30, s70, {t*128*3584}")
                e(f"s_add_u32 m0, s71, {LDS_W + mtx*28672 + t*8192}")
                e("s_nop 0")
                e("buffer_load_dwordx4 v11, s[20:23], s30 offen nt lds")
                if lab:
                    e(f"{lab}:")
        self.srd(20, 48, 1605632)
        e("v_lshlrev_b32 v11, 4, v10")
        e("s_mul_i32 s70, s69, 28672")
        for t in range(4):
            lab = None
            if t == 3:
                lab = self.label("Lskip")
                e("s_cmp_gt_u32 s3, 3")
                e(f"s_cbranch_scc1 {lab}")
            e(f"s_add_u32 s30, s70, {t*8192}")
            e(f"s_add_u32 m0, s71, {LDS_W + 57344 + t*8192}")
            e("s_nop 0")
            e("buffer_load_dwordx4 v11, s[20:23], s30 offen nt lds")
            if lab:
                e(f"{lab}:")
        e(f"{done}:")

    def s2(self):
        e = self.e
        e("s_lshr_b32 s72, s69, 2")
        e(f"s_mul_i32 s30, s72, {32 * PO_BLK}")
        e(f"s_add_u32 s30, s30, {WS_PO}")
        e("v_and_b32 v7, 31, v0")
        e(f"v_mul_u32_u24 v7, {PO_BLK}, v7")
        e("v_add_u32 v7, s30, v7")
        e(f"s_mul_i32 s31, s3, {4 * PO_BLK}")
        e("s_add_u32 s30, s30, s31")
        e("v_lshlrev_b32 v5, 4, v0")
        e("v_add_u32 v6, s30, v5")
        e(f"v_add_u32 v9, {2 * PO_BLK}, v6")
        e("v_bfe_u32 v3, v0, 2, 2")
        e("v_lshrrev_b32 v4, 4, v0")
        e("v_lshl_add_u32 v3, v4, 3, v3")
        e("v_mul_u32_u24 v3, 224, v3")
        e("v_and_b32 v4, 3, v0")
        e("v_lshl_add_u32 v3, v4, 3, v3")
        e("s_lshl_b32 s30, s3, 5")
        e(f"s_add_u32 s30, s30, {LDS_W}")
        e("v_add_u32 v3, s30, v3")
        e("s_lshl_b32 s30, s3, 10")
        e(f"s_add_u32 s31, s30, {LDS_O}")
        e("v_add_u32 v72, s31, v5")
        e(f"v_add_u32 v73, {LDS_O}, v5")
        e(f"s_add_u32 s31, s30, {LDS_PRIV}")
        e("v_lshlrev_b32 v74, 3, v0")
        e("v_add_u32 v74, s31, v74")
        e("v_lshrrev_b32 v75, 4, v0")
        e("v_lshlrev_b32 v76, 4, v75")
        e("v_add_u32 v76, s31, v76")
        e("s_and_b32 s30, s69, 3")
        e("s_mul_i32 s30, s30, 448")
        e("s_lshl_b32 s31, s3, 6")
        e("s_add_u32 s30, s30, s31")
        e("s_lshl_b32 s31, s72, 11")
        e("s_add_u32 s30, s30, s31")
        e(f"s_add_u32 s30, s30, {WS_Y}")
        e("v_lshlrev_b32 v77, 2, v0")
        e("v_add_u32 v77, s30, v77")
        self.pack_dw_consts("v78", "v79", 66)
        e("s_waitcnt vmcnt(0)")
        e("s_barrier")
        e("s_cmp_gt_u32 s3, 6")
        e("s_cbranch_scc1 L_s2_now")
        for s in range(8):
            e(f"ds_read_b64_tr_b16 a[{4*s}:{4*s+1}], v3 offset:{s*7168}")
            e(f"ds_read_b64_tr_b16 a[{4*s+2}:{4*s+3}], v3 offset:{s*7168 + 896}")
        e("L_s2_now:")
        self.stamp(12)
        self.rpoll([(V(48, 4), "v7", 1024), (V(32, 4), "v6", 0), (V(36, 4), "v6", PO_BLK), (V(40, 4), "v9", 0),
                    (V(44, 4), "v9", PO_BLK)], "v8", unpack=False)
        self.stamp(15, "s7")
        self.stamp(6)
        self.unpack4(V(48, 4))
        e("v_mov_b32 v9, v51")
        self.unpack4(V(32, 4))
        e("v_max_f32_dpp v9, v9, v9 quad_perm:[1,0,3,2] row_mask:0xf bank_mask:0xf")
        self.unpack4(V(36, 4))
        e("v_max_f32_dpp v9, v9, v9 quad_perm:[2,3,0,1] row_mask:0xf bank_mask:0xf")
        self.unpack4(V(40, 4))
        e("v_max_f32_dpp v9, v9, v9 row_half_mirror row_mask:0xf bank_mask:0xf")
        self.unpack4(V(44, 4))
        e("v_max_f32_dpp v9, v9, v9 row_mirror row_mask:0xf bank_mask:0xf")
        e("s_lshl_b32 s30, s3, 2")
        e("v_mov_b32 v10, v9")
        e("s_nop 1")
        e("v_permlane16_swap_b32 v9, v10")
        e("s_nop 1")
        e("v_max_f32 v9, v9, v10")
        e("v_sub_f32 v10, v51, v9")
        e("v_mul_f32 v10, s63, v10")
        e("v_exp_f32 v10, v10")
        e("s_add_u32 s31, s30, 1")
        e("s_add_u32 s29, s30, 2")
        e("s_add_u32 s28, s30, 3")
        e("v_readlane_b32 s74, v10, s30")
        e("v_readlane_b32 s75, v10, s31")
        e("v_readlane_b32 s76, v10, s29")
        e("v_readlane_b32 s77, v10, s28")
        e("v_mul_f32 v11, v10, v48")
        for j in range(4):
            e(f"v_mul_f32 v{12+j}, s74, v{32+j}")
        for k in range(1, 4):
            for j in range(4):
                e(f"v_fma_f32 v{12+j}, s{74+k}, v{32+4*k+j}, v{12+j}")
        e("ds_write_b128 v72, v[12:15]")
        e("v_add_f32_dpp v11, v11, v11 quad_perm:[1,0,3,2] row_mask:0xf bank_mask:0xf")
        e("s_nop 1")
        e("v_add_f32_dpp v11, v11, v11 quad_perm:[2,3,0,1] row_mask:0xf bank_mask:0xf")
        e("s_waitcnt lgkmcnt(0)")
        e("s_barrier")
        e("s_cmp_gt_u32 s3, 6")
        e("s_cbranch_scc1 L_end")
        for wv in range(8):
            e(f"ds_read_b128 v[{32+4*wv}:{35+4*wv}], v73 offset:{1024*wv}")
        e("v_add_f32_dpp v11, v11, v11 row_half_mirror row_mask:0xf bank_mask:0xf")
        e("s_nop 1")
        e("v_add_f32_dpp v11, v11, v11 row_mirror row_mask:0xf bank_mask:0xf")
        e("s_nop 0")
        e("v_mov_b32 v10, v11")
        e("s_nop 1")
        e("v_permlane16_swap_b32 v11, v10")
        e("s_nop 1")
        e("v_add_f32 v11, v11, v10")
        e("v_rcp_f32 v10, v11")
        for pair in range(4):
            e(f"s_waitcnt lgkmcnt({6 - 2*pair})")
            for j in range(4):
                e(f"v_add_f32 v{32+8*pair+j}, v{32+8*pair+j}, v{36+8*pair+j}")
        for j in range(4):
            e(f"v_add_f32 v{32+j}, v{32+j}, v{40+j}")
            e(f"v_add_f32 v{48+j}, v{48+j}, v{56+j}")
        e("v_fma_f32 v9, -v10, v11, 1.0")
        e("v_fma_f32 v10, v9, v10, v10")
        for j in range(4):
            e(f"v_add_f32 v{32+j}, v{32+j}, v{48+j}")
        for j in range(4):
            e(f"v_mul_f32 v{32+j}, v{32+j}, v10")
        e("v_cvt_pk_bf16_f32 v12, v32, v33")
        e("v_cvt_pk_bf16_f32 v13, v34, v35")
        e("ds_write_b64 v74, v[12:13]")
        e("s_waitcnt lgkmcnt(0)")
        for s in range(8):
            e(f"ds_read_b128 v[{32+4*s}:{35+4*s}], v76 offset:{64*s}")
        for s in range(8):
            e(f"s_waitcnt lgkmcnt({7-s})")
            c = "0" if s == 0 else "v[16:19]"
            e(f"v_mfma_f32_16x16x32_bf16 v[16:19], v[{32+4*s}:{35+4*s}], a[{4*s}:{4*s+3}], {c}")
        e("s_nop 7")
        self.pack_dw("v24", "v16", "v25", "v78", "v79", "s[66:67]")
        e("s_mov_b64 exec, 0xffff")
        e("buffer_store_dword v24, v77, s[16:19], 0 offen sc1")
        e("s_mov_b64 exec, -1")
        self.stamp(7)

    def s3(self):
        e = self.e
        self.srd(24, 32, 896)
        e("v_and_b32 v9, 15, v0")
        e("s_lshl_b32 s30, s3, 7")
        e("v_lshl_add_u32 v5, v9, 3, s30")
        e("buffer_load_dwordx2 v[84:85], v5, s[24:27], 0 offen")
        e(f"v_add_u32 v86, {LDS_H}, v5")
        e("v_lshrrev_b32 v4, 4, v0")
        e("v_lshlrev_b32 v8, 13, v4")
        e("v_lshl_add_u32 v8, v9, 4, v8")
        e("s_lshl_b32 s30, s3, 8")
        e(f"s_add_u32 s30, s30, {WS_Y}")
        e("v_add_u32 v8, s30, v8")
        e("v_add_u32 v10, 4096, v8")
        e("v_bfe_u32 v3, v0, 2, 2")
        e("v_lshl_add_u32 v3, v4, 3, v3")
        e("v_lshlrev_b32 v6, 6, v3")
        e("v_and_b32 v11, 3, v0")
        e("v_lshl_add_u32 v6, v11, 3, v6")
        e("s_and_b32 s30, s3, 1")
        e("s_mul_i32 s30, s30, 28672")
        e("s_bfe_u32 s31, s3, 0x10001")
        e("s_lshl_b32 s31, s31, 5")
        e("s_add_u32 s30, s30, s31")
        e("s_lshr_b32 s31, s3, 2")
        e(f"s_mul_i32 s31, s31, {7 * 2048}")
        e("s_add_u32 s30, s30, s31")
        e(f"s_add_u32 s30, s30, {LDS_W}")
        e("v_add_u32 v6, s30, v6")
        e("v_mul_u32_u24 v7, 0x380, v3")
        e("v_lshl_add_u32 v7, v11, 3, v7")
        e("s_lshl_b32 s30, s3, 7")
        e(f"s_add_u32 s30, s30, {LDS_W + 57344}")
        e("v_add_u32 v7, s30, v7")
        e("s_lshr_b32 s30, s3, 2")
        e("s_lshl_b32 s30, s30, 8")
        e("s_and_b32 s31, s3, 1")
        e("s_lshl_b32 s31, s31, 7")
        e("s_add_u32 s30, s30, s31")
        e("s_bfe_u32 s31, s3, 0x10001")
        e("s_lshl_b32 s31, s31, 6")
        e("s_add_u32 s30, s30, s31")
        e(f"s_add_u32 s30, s30, {LDS_GU}")
        e("v_lshlrev_b32 v87, 4, v4")
        e("v_lshl_add_u32 v88, v9, 2, s30")
        e("s_lshr_b32 s30, s3, 2")
        e("s_mul_i32 s30, s30, 448")
        e(f"s_add_u32 s30, s30, {LDS_H}")
        e("v_add_u32 v89, s30, v87")
        e("v_and_b32 v11, 31, v0")
        e("v_lshlrev_b32 v90, 2, v11")
        e(f"v_add_u32 v90, {LDS_GU}, v90")
        e("s_lshl_b32 s31, s3, 10")
        e(f"s_add_u32 s31, s31, {LDS_PRIV}")
        e("v_lshlrev_b32 v91, 1, v11")
        e("v_add_u32 v91, s31, v91")
        e("v_add_u32 v92, s31, v87")
        e("s_lshl_b32 s30, s69, 11")
        e("s_lshl_b32 s31, s3, 8")
        e("s_add_u32 s30, s30, s31")
        e(f"s_add_u32 s30, s30, {WS_Z}")
        e("v_lshl_add_u32 v93, v0, 2, s30")
        self.pack_dw_consts("v60", "v61", 46)
        e("v_lshrrev_b32 v62, 3, v0")
        e("v_lshlrev_b32 v62, 11, v62")
        e("v_and_b32 v12, 7, v0")
        e("v_lshl_add_u32 v62, v12, 4, v62")
        e("s_lshr_b32 s30, s69, 2")
        e("s_lshl_b32 s30, s30, 7")
        e(f"s_add_u32 s30, s30, {WS_Z}")
        e("v_add_u32 v62, s30, v62")
        if self.warm:
            e("s_cmp_lg_u32 s3, 7")
            e("s_cbranch_scc1 L_s3_nowarm")
            e("s_and_b32 s30, s69, 3")
            e("s_cmp_lg_u32 s30, 0")
            e("s_cbranch_scc1 L_s3_nowarm")
            for i in range(7):
                e(f"s_mov_b32 s30, {i*16384}")
                e(f"buffer_load_dwordx4 v[32:35], v62, s[16:19], s30 offen sc1")
            e("L_s3_nowarm:")
        e("s_waitcnt vmcnt(0)")
        e("s_barrier")
        for s in range(7):
            e(f"ds_read_b64_tr_b16 a[{4*s}:{4*s+1}], v6 offset:{s*2048}")
            e(f"ds_read_b64_tr_b16 a[{4*s+2}:{4*s+3}], v6 offset:{s*2048 + 256}")
        e("s_cmp_gt_u32 s3, 6")
        e("s_cbranch_scc1 L_s3_notr")
        for t in range(4):
            e(f"ds_read_b64_tr_b16 a[{32+4*t}:{33+4*t}], v7 offset:{t*32}")
            e(f"ds_read_b64_tr_b16 a[{34+4*t}:{35+4*t}], v7 offset:{t*32 + 3584}")
        e("L_s3_notr:")
        for j in range(4):
            e(f"v_mov_b32 v{20+j}, 0x3f803f80")
        e("s_waitcnt lgkmcnt(0)")
        for s in range(7):
            c = "0" if s == 0 else "v[16:19]"
            e(f"v_mfma_f32_16x16x32_bf16 v[16:19], v[20:23], a[{4*s}:{4*s+3}], {c}")
        e("s_nop 7")
        e("s_mov_b64 exec, 0xffff")
        e("ds_write_b32 v88, v16 offset:512")
        e("s_mov_b64 exec, -1")
        e("s_waitcnt lgkmcnt(0)")
        e("s_barrier")
        e("ds_read_b32 v16, v90 offset:512")
        e("ds_read_b32 v17, v90 offset:768")
        e("ds_read_b32 v18, v90 offset:640")
        e("ds_read_b32 v19, v90 offset:896")
        e("v_lshlrev_b32 v80, 16, v84")
        e("v_and_b32 v81, 0xffff0000, v84")
        e("v_lshlrev_b32 v82, 16, v85")
        e("v_and_b32 v83, 0xffff0000, v85")
        e("s_mov_b32 s66, -1")
        e("s_mov_b32 s67, 0x00ffffff")
        e("v_mov_b32 v23, 1.0")
        e("v_cndmask_b32 v22, 0, v23, s[66:67]")
        e("s_waitcnt lgkmcnt(0)")
        e("v_add_f32 v94, v16, v17")
        e("v_add_f32 v84, v18, v19")
        e("s_cmp_gt_u32 s3, 6")
        e("s_cbranch_scc1 L_s3_nogather")
        self.stamp(12)
        self.badt = "v12"
        self.rpoll([(V(32, 4), "v8", 0), (V(36, 4), "v8", 2048), (V(40, 4), "v10", 0), (V(44, 4), "v10", 2048)], "v11")
        self.badt = "v95"
        self.stamp(15, "s7")
        self.stamp(6)
        for j in range(4):
            e(f"v_add_f32 v{32+j}, v{32+j}, v{36+j}")
            e(f"v_add_f32 v{40+j}, v{40+j}, v{44+j}")
        for j in range(4):
            e(f"v_add_f32 v{32+j}, v{32+j}, v{40+j}")
        self.xsum(V(32, 4), V(36, 4))
        e("v_cvt_pk_bf16_f32 v36, v32, v33")
        e("v_cvt_pk_bf16_f32 v37, v34, v35")
        e("v_lshlrev_b32 v32, 16, v36")
        e("v_and_b32 v33, 0xffff0000, v36")
        e("v_lshlrev_b32 v34, 16, v37")
        e("v_and_b32 v35, 0xffff0000, v37")
        for j in range(4):
            e(f"v_add_f32 v{32+j}, v{32+j}, v{80+j}")
        e("v_cvt_pk_bf16_f32 v36, v32, v33")
        e("v_cvt_pk_bf16_f32 v37, v34, v35")
        e("s_mov_b64 exec, 0xffff")
        e("ds_write_b64 v86, v[36:37]")
        e("s_mov_b64 exec, -1")
        e("L_s3_nogather:")
        e("s_waitcnt lgkmcnt(0)")
        e("s_barrier")
        regs = [64, 68, 72, 76, 48, 52, 56]
        for s in range(7):
            e(f"ds_read_b128 v[{regs[s]}:{regs[s]+3}], v89 offset:{64*s}")
        e("v_lshlrev_b32 v8, 4, v0")
        e(f"v_add_u32 v8, {LDS_H}, v8")
        e("ds_read_b128 v[24:27], v8")
        for s in range(7):
            e(f"s_waitcnt lgkmcnt({7-s})")
            c = "0" if s == 0 else "v[16:19]"
            e(f"v_mfma_f32_16x16x32_bf16 v[16:19], v[{regs[s]}:{regs[s]+3}], a[{4*s}:{4*s+3}], {c}")
        e("s_waitcnt lgkmcnt(0)")
        for j in range(4):
            e(f"v_cndmask_b32 v{24+j}, 0, v{24+j}, s[66:67]")
        self.unpack8(V(32, 8), V(24, 4))
        e("s_mov_b64 exec, 0xffff")
        e("ds_write_b32 v88, v16")
        e("s_mov_b64 exec, -1")
        self.ln_stats(V(32, 8), "v22", V(40, 6))
        e("s_waitcnt lgkmcnt(0)")
        e("s_barrier")
        e("s_cmp_gt_u32 s3, 6")
        e("s_cbranch_scc1 L_s3_w7b")
        e("ds_read_b32 v16, v90")
        e("ds_read_b32 v17, v90 offset:256")
        e("ds_read_b32 v18, v90 offset:128")
        e("ds_read_b32 v19, v90 offset:384")
        e("s_waitcnt lgkmcnt(2)")
        e("v_add_f32 v16, v16, v17")
        e("v_fma_f32 v16, -v40, v94, v16")
        e("s_waitcnt lgkmcnt(0)")
        e("v_add_f32 v18, v18, v19")
        e("v_fma_f32 v18, -v40, v84, v18")
        e("v_mul_f32 v17, v16, v42")
        e("v_mul_f32 v19, v18, v42")
        e("v_fma_f32 v16, -v17, v41, v16")
        e("v_fma_f32 v18, -v19, v41, v18")
        e("v_fma_f32 v16, v16, v42, v17")
        e("v_fma_f32 v18, v18, v42, v19")
        e("v_cvt_pk_bf16_f32 v17, v16, v18")
        e("v_lshlrev_b32 v16, 16, v17")
        e("v_and_b32 v18, 0xffff0000, v17")
        e("v_mul_f32 v17, v16, v16")
        e("v_mov_b32 v19, 0x3d372713")
        e("v_mul_f32 v17, v17, v16")
        e("v_fma_f32 v17, v17, v19, v16")
        e("v_mul_f32 v17, 0xc0135761, v17")
        e("v_min_f32 v17, 0x42fc0000, v17")
        e("v_exp_f32 v17, v17")
        e("s_nop 0")
        e("v_add_f32 v17, 1.0, v17")
        e("v_rcp_f32 v19, v17")
        e("s_nop 0")
        e("v_mul_f32 v20, v16, v19")
        e("v_fma_f32 v21, -v20, v17, v16")
        e("v_fma_f32 v20, v21, v19, v20")
        self.rne("v20", "v20")
        e("v_mul_f32 v20, v20, v18")
        e("v_cvt_pk_bf16_f32 v20, v20, v20")
        e("ds_write_b16 v91, v20")
        e("s_mov_b32 s40, 0xffff0000")
        e("s_mov_b32 s41, 0")
        e("s_mov_b32 s42, 0")
        e("s_mov_b32 s43, 0x0000ffff")
        e("s_mov_b32 s44, 0")
        e("s_mov_b32 s45, 0xffff0000")
        e("s_waitcnt lgkmcnt(0)")
        e("ds_read_b128 v[16:19], v92")
        e("s_waitcnt lgkmcnt(0)")
        for t in range(4):
            e(f"v_mfma_f32_16x16x32_bf16 v[{32+4*t}:{35+4*t}], v[16:19], a[{32+4*t}:{35+4*t}], 0")
        e("s_nop 5")
        e("v_cndmask_b32 v32, v32, v36, s[40:41]")
        e("v_cndmask_b32 v32, v32, v40, s[42:43]")
        e("s_nop 0")
        e("v_cndmask_b32 v32, v32, v44, s[44:45]")
        e("s_nop 1")
        self.pack_dw("v24", "v32", "v25", "v60", "v61", "s[46:47]")
        e("buffer_store_dword v24, v93, s[16:19], 0 offen sc1")
        self.stamp(7)
        e("s_branch L_end")
        e("L_s3_w7b:")
        e("s_and_b32 s30, s69, 3")
        e("s_cmp_lg_u32 s30, 0")
        e("s_cbranch_scc1 L_end")
        e("v_and_b32 v12, 7, v0")
        e("s_lshl_b32 s30, s69, 4")
        e("v_lshl_add_u32 v5, v12, 3, s30")
        e(f"v_add_u32 v8, {LDS_H}, v5")
        e("ds_read_b64 v[24:25], v8")
        self.srd(24, 50, 896)
        loads = []
        for i in range(7):
            e(f"v_add_u32 v{16+i}, {i*16384}, v62")
            loads.append((V(64 + 4 * i, 4), f"v{16+i}", 0))
        e("s_waitcnt lgkmcnt(0)")
        e("v_lshlrev_b32 v32, 16, v24")
        e("v_and_b32 v33, 0xffff0000, v24")
        e("v_lshlrev_b32 v34, 16, v25")
        e("v_and_b32 v35, 0xffff0000, v25")
        self.stamp(10)
        self.rpoll(loads, "v11")
        self.stamp(11, "s7")
        self.stamp(8)
        for j in range(4):
            e(f"v_add_f32 v{64+j}, v{64+j}, v{68+j}")
            e(f"v_add_f32 v{72+j}, v{72+j}, v{76+j}")
            e(f"v_add_f32 v{80+j}, v{80+j}, v{84+j}")
        for j in range(4):
            e(f"v_add_f32 v{64+j}, v{64+j}, v{72+j}")
            e(f"v_add_f32 v{80+j}, v{80+j}, v{88+j}")
        for j in range(4):
            e(f"v_add_f32 v{64+j}, v{64+j}, v{80+j}")
        e("s_nop 0")
        for j in (1, 2, 3, 0):
            pass
        for j in range(4):
            e(f"v_add_f32_dpp v{64+j}, v{64+j}, v{64+j} row_ror:8 row_mask:0xf bank_mask:0xf")
        self.xsum(V(64, 4), V(68, 4))
        e("v_cvt_pk_bf16_f32 v68, v64, v65")
        e("v_cvt_pk_bf16_f32 v69, v66, v67")
        e("v_lshlrev_b32 v64, 16, v68")
        e("v_and_b32 v65, 0xffff0000, v68")
        e("v_lshlrev_b32 v66, 16, v69")
        e("v_and_b32 v67, 0xffff0000, v69")
        for j in range(4):
            e(f"v_add_f32 v{64+j}, v{64+j}, v{32+j}")
        e("v_cvt_pk_bf16_f32 v68, v64, v65")
        e("v_cvt_pk_bf16_f32 v69, v66, v67")
        e("s_mov_b64 exec, 0xff")
        e("buffer_store_dwordx2 v[68:69], v5, s[24:27], 0 offen")
        e("s_cmp_lg_u32 s69, 0")
        e("s_cbranch_scc1 L_s4_done")
        e("v_mov_b32 v8, s6")
        e("v_mov_b32 v9, 0")
        e("s_mov_b64 exec, 1")
        e("buffer_store_dword v8, v9, s[16:19], 0 offen sc1")
        e("L_s4_done:")
        e("s_mov_b64 exec, -1")
        self.stamp(9)

    def text(self):
        self.build()
        src = HDR + f"; @launch grid=(256,1,1) block=(512,1,1) lds={LDS_TOTAL + self.lds_pad}\n"
        src += '.amdgcn_target "amdgcn-amd-amdhsa--gfx950"\n.text\n'
        src += f".globl {KERN}\n.p2align 8\n.type {KERN},@function\n{KERN}:\n"
        src += "\n".join(self.o) + "\n"
        nacc = self.NS * 4
        src += f""".section .rodata,"a"
.p2align 6
.amdhsa_kernel {KERN}
  .amdhsa_next_free_vgpr {96 + nacc}
  .amdhsa_next_free_sgpr 102
  .amdhsa_accum_offset 96
  .amdhsa_group_segment_fixed_size 0
  .amdhsa_kernarg_size 96
  .amdhsa_user_sgpr_count 2
  .amdhsa_user_sgpr_kernarg_segment_ptr 1
  .amdhsa_system_sgpr_workgroup_id_x 1
.end_amdhsa_kernel
"""
        return src


if __name__ == "__main__":
    import argparse
    ap = argparse.ArgumentParser()
    ap.add_argument("-o", default="k3.s")
    ap.add_argument("--NS", type=int, default=40)
    ap.add_argument("--W0", type=int, default=8)
    ap.add_argument("--W", type=int, default=6)
    ap.add_argument("--stamps", action="store_true")
    ap.add_argument("--sleep", type=int, default=1)
    ap.add_argument("--s3_even", action="store_true")
    ap.add_argument("--dma_early", action="store_true")
    ap.add_argument("--R", type=int, default=0)
    ap.add_argument("--qsleep", type=int, default=0)
    ap.add_argument("--nowarm", action="store_true")
    ap.add_argument("--trace", type=int, default=2)
    a = ap.parse_args()
    TR = a.trace
    g = Gen(NS=a.NS, W0=a.W0, W=a.W, stamps=a.stamps, sleep=a.sleep, s3_odd=not a.s3_even, dma_late=not a.dma_early, R=a.R, qsleep=a.qsleep, warm=not a.nowarm)
    g.trace_n = TR
    open(a.o, "w").write(g.text())
```

```python
NAME = "sequential_preLN__gqa_block_cached__geglu_ffn__decode"
KERN = NAME + "_kernel"
HDR = open("cdna_kernels/%s.s.ref" % NAME).read().split("; Override launch")[0]

WS_QX = 0x1000
WS_PO = 0x20000
PO_BLK = 1152
WS_Y = 0x100000
WS_Z = 0x120000
WS_STAMP = 64 << 20
WS_SIZE = 512 << 20

LDS_W = 0
LDS_O = 86016
LDS_ML = LDS_O + 16384
LDS_Q = LDS_ML + 128
LDS_H = LDS_Q + 1024
LDS_PRIV = LDS_H + 1024
LDS_GU = LDS_PRIV + 8192
LDS_CS = LDS_GU + 512
LDS_ST = LDS_CS + 512
LDS_TOTAL = LDS_ST + 64

CEXP = 0x3DB8AA3B
F_INV448 = 0x3B124925
F_448 = 0x43E00000
F_EPS = 0x3727C5AC
POLL_MAX = 0x40000


def V(a, n):
    return [f"v{a+i}" for i in range(n)]


class Gen:
    def __init__(self, NS=40, W0=8, W=6, stamps=False, sleep=1, lds_pad=0, s3_odd=True, dma_late=True, R=0, qsleep=0, warm=True, w0early=True, MP=0, thr=16, slow=6):
        self.o = []
        self.NS, self.W0, self.W = NS, W0, W
        self.stamps = stamps
        self.sleep = sleep
        self.lab = 0
        self.light = False
        self.lds_pad = lds_pad
        self.s3_odd = s3_odd
        self.dma_late = dma_late
        self.R = R
        self.fast = True
        self.ZS = 2048
        self.YS = 2048
        self.split2 = False
        self.s2grp = False
        self.local1 = False
        self.dma_mid = False
        self.s4sync = False
        self.MPn = (7,)
        self.MP = MP
        self.thr = thr
        self.slow = slow
        self.w0early = w0early
        self.warm = warm
        self.trace_n = 2
        self.qsleep = qsleep

    def e(self, s):
        for line in s.strip("\n").split("\n"):
            line = line.strip()
            if not line:
                continue
            self.o.append(line if line.endswith(":") else "    " + line)

    def label(self, p="L"):
        self.lab += 1
        return f"{p}_{self.lab}"

    def stamp(self, k, src=None):
        if not self.stamps:
            return
        if self.light and k not in (4, 9, 14):
            return
        if src is None:
            self.e("s_memrealtime s[98:99]")
            self.e("s_waitcnt lgkmcnt(0)")
            self.e(f"s_mov_b32 s{80+k}, s98")
        else:
            self.e(f"s_mov_b32 s{80+k}, {src}")

    def stamp_flush(self):
        if not self.stamps:
            return
        e = self.e
        e("s_mov_b64 exec, -1")
        for k in range(16):
            e(f"v_mov_b32 v{32+k}, s{80+k}")
        e("s_lshl_b32 s30, s2, 3")
        e("s_add_u32 s30, s30, s3")
        e("s_lshl_b32 s30, s30, 6")
        e(f"s_add_u32 s30, s30, {WS_STAMP}")
        e("v_mov_b32 v3, s30")
        e("s_mov_b64 exec, 1")
        for k in range(4):
            e(f"buffer_store_dwordx4 v[{32+4*k}:{35+4*k}], v3, s[16:19], 0 offen offset:{16*k}")

    def rne(self, dst, src):
        self.e(f"v_cvt_pk_bf16_f32 {dst}, {src}, {src}")
        self.e(f"v_lshlrev_b32 {dst}, 16, {dst}")

    def wave_sum(self, regs):
        steps = ["row_shr:1 row_mask:0xf bank_mask:0xf bound_ctrl:0",
                 "row_shr:2 row_mask:0xf bank_mask:0xf bound_ctrl:0",
                 "row_shr:4 row_mask:0xf bank_mask:0xf bound_ctrl:0",
                 "row_shr:8 row_mask:0xf bank_mask:0xf bound_ctrl:0",
                 "row_bcast:15 row_mask:0xa bank_mask:0xf",
                 "row_bcast:31 row_mask:0xc bank_mask:0xf"]
        n = len(regs)
        if n < 3:
            self.e("s_nop 1")
        for st in steps:
            for r in regs:
                self.e(f"v_add_f32_dpp {r}, {r}, {r} {st}")
            if n == 1:
                self.e("s_nop 1")
            elif n == 2:
                self.e("s_nop 0")

    def pack4(self, w, v):
        self.e(f"v_perm_b32 {w[0]}, {v[0]}, {v[3]}, s58")
        self.e(f"v_perm_b32 {w[1]}, {v[1]}, {v[3]}, s59")
        self.e(f"v_perm_b32 {w[2]}, {v[2]}, {v[3]}, s60")
        self.e(f"v_add3_u32 {w[3]}, {w[0]}, {w[1]}, {w[2]}")
        self.e(f"v_sub_u32 {w[3]}, s6, {w[3]}")

    def pack_dw(self, out, v, tmp, selv, vtag, m3):
        e = self.e
        e(f"v_mov_b32_dpp {tmp}, {v} quad_perm:[3,3,3,3] row_mask:0xf bank_mask:0xf")
        e(f"v_perm_b32 {out}, {v}, {tmp}, {selv}")
        e("s_nop 1")
        e(f"v_add_u32_dpp {tmp}, {out}, {out} quad_perm:[1,0,3,2] row_mask:0xf bank_mask:0xf")
        e("s_nop 1")
        e(f"v_add_u32_dpp {tmp}, {tmp}, {tmp} quad_perm:[2,3,0,1] row_mask:0xf bank_mask:0xf")
        e(f"v_sub_u32 {tmp}, {vtag}, {tmp}")
        e(f"v_cndmask_b32 {out}, {out}, {tmp}, {m3}")

    def pack_dw_consts(self, selv, vtag, m3lo):
        e = self.e
        e(f"s_mov_b32 s{m3lo}, 0x88888888")
        e(f"s_mov_b32 s{m3lo+1}, 0x88888888")
        e(f"v_and_b32 {selv}, 3, v0")
        e(f"v_add_u32 {selv}, 0x07060501, {selv}")
        e(f"v_mov_b32 {vtag}, 0x0c0c0c0c")
        e(f"v_cndmask_b32 {selv}, {selv}, {vtag}, s[{m3lo}:{m3lo+1}]")
        e(f"v_mov_b32 {vtag}, s6")

    def unpack4(self, w):
        self.e(f"v_perm_b32 {w[3]}, {w[1]}, {w[0]}, s61")
        self.e(f"v_perm_b32 {w[3]}, {w[2]}, {w[3]}, s62")

    def poll(self, loads, bad, mask=None, unpack=True):
        e = self.e
        lp = self.label("Lpoll")
        dn = self.label("Lpdone")
        e("s_mov_b32 s7, 0")
        if mask is not None:
            e(f"s_mov_b64 exec, {mask}")
        e(f"{lp}:")
        for regs, va, off in loads:
            r0 = int(regs[0][1:])
            e(f"buffer_load_dwordx4 v[{r0}:{r0+3}], {va}, s[16:19], 0 offen offset:{off} sc1")
        n = len(loads)
        for k, (regs, va, off) in enumerate(loads):
            e(f"s_waitcnt vmcnt({n - 1 - k})")
            w = regs
            e(f"v_xor_b32 {w[3]}, {w[3]}, {w[0]}")
            e(f"v_xor_b32 {bad if k == 0 else bad + '_t'}, {w[1]}, {w[2]}".replace(bad + "_t", self.badt))
            if k == 0:
                e(f"v_xor_b32 {w[3]}, s6, {w[3]}")
                e(f"v_xor_b32 {bad}, {bad}, {w[3]}")
            else:
                e(f"v_xor_b32 {w[3]}, s6, {w[3]}")
                e(f"v_xor_b32 {w[3]}, {w[3]}, {self.badt}")
                e(f"v_or_b32 {bad}, {bad}, {w[3]}")
        e(f"v_cmp_ne_u32 vcc, 0, {bad}")
        e("s_add_u32 s7, s7, 1")
        e(f"s_cbranch_vccz {dn}")
        e(f"s_cmp_gt_u32 s7, 0x{POLL_MAX:x}")
        e(f"s_cbranch_scc1 {dn}")
        if self.sleep:
            e(f"s_sleep {self.sleep}")
        e(f"s_branch {lp}")
        e(f"{dn}:")
        if unpack:
            for regs, va, off in loads:
                self.unpack4(regs)
        if mask is not None:
            e("s_mov_b64 exec, -1")

    def poll_pipe(self, loads, bad, mask=None, unpack=True, R=4, abase=64):
        e = self.e
        n = len(loads)
        lp = self.label("Lpp")
        dn = self.label("Lppdone")

        def issue(j):
            for k, (regs, va, off) in enumerate(loads):
                a = abase + (j * n + k) * 4
                e(f"buffer_load_dwordx4 a[{a}:{a+3}], {va}, s[16:19], 0 offen offset:{off} sc1")

        e("s_mov_b32 s7, 0")
        if mask is not None:
            e(f"s_mov_b64 exec, {mask}")
        for j in range(R - 1):
            issue(j)
        e(f"{lp}:")
        for j in range(R):
            issue((j + R - 1) % R)
            for k, (regs, va, off) in enumerate(loads):
                e(f"s_waitcnt vmcnt({(R - 1) * n + n - 1 - k})")
                a = abase + (j * n + k) * 4
                w = regs
                for i in range(4):
                    e(f"v_accvgpr_read_b32 {w[i]}, a{a+i}")
                tgt = bad if k == 0 else self.badt
                e(f"v_xor_b32 {tgt}, {w[1]}, {w[2]}")
                e(f"v_xor_b32 {w[3]}, {w[3]}, {w[0]}")
                e(f"v_xor_b32 {w[3]}, s6, {w[3]}")
                if k == 0:
                    e(f"v_xor_b32 {bad}, {bad}, {w[3]}")
                else:
                    e(f"v_xor_b32 {w[3]}, {w[3]}, {self.badt}")
                    e(f"v_or_b32 {bad}, {bad}, {w[3]}")
            e(f"v_cmp_ne_u32 vcc, 0, {bad}")
            e("s_add_u32 s7, s7, 1")
            e(f"s_cbranch_vccz {dn}")
        e(f"s_cmp_gt_u32 s7, 0x{POLL_MAX:x}")
        e(f"s_cbranch_scc0 {lp}")
        e(f"{dn}:")
        if unpack:
            for regs, va, off in loads:
                self.unpack4(regs)
        if mask is not None:
            e("s_mov_b64 exec, -1")

    def poll_masked(self, loads, sbase, mask=None, unpack=True, sleep=None, presleep=0, trace=False):
        e = self.e
        n = len(loads)
        lp = self.label("Lpm")
        dn = self.label("Lpmdone")
        sm = [f"s[{sbase+2*k}:{sbase+2*k+1}]" for k in range(n)]
        e("s_mov_b32 s7, 0")
        for k in range(n):
            e(f"s_mov_b64 {sm[k]}, {mask if mask is not None else -1}")
        if presleep:
            e(f"s_sleep {presleep}")
        e(f"{lp}:")
        for k, (regs, va, off) in enumerate(loads):
            sk = self.label("Lsk")
            r0 = int(regs[0][1:])
            e(f"s_cmp_eq_u64 {sm[k]}, 0")
            e(f"s_cbranch_scc1 {sk}")
            e(f"s_mov_b64 exec, {sm[k]}")
            e(f"buffer_load_dwordx4 v[{r0}:{r0+3}], {va}, s[16:19], 0 offen offset:{off} sc1")
            e(f"{sk}:")
        e("s_waitcnt vmcnt(0)")
        if trace and self.stamps:
            e("s_memrealtime s[98:99]")
            for k in range(5):
                e(f"s_mov_b32 s{80+k}, s{81+k}")
            e("s_waitcnt lgkmcnt(0)")
            e("s_mov_b32 s85, s98")
        for k, (regs, va, off) in enumerate(loads):
            w = regs
            sk = self.label("Lck")
            if n > 2:
                e(f"s_cmp_eq_u64 {sm[k]}, 0")
                e(f"s_cbranch_scc1 {sk}")
            e(f"s_mov_b64 exec, {sm[k]}")
            e(f"v_add3_u32 {self.badt}, {w[0]}, {w[1]}, {w[2]}")
            e(f"v_add_u32 {self.badt}, {self.badt}, {w[3]}")
            e(f"v_cmp_ne_u32 {sm[k]}, s6, {self.badt}")
            if n > 2:
                e(f"{sk}:")
        e("s_add_u32 s7, s7, 1")
        e(f"s_mov_b64 vcc, {sm[0]}")
        for k in range(1, n):
            e(f"s_or_b64 vcc, vcc, {sm[k]}")
        e("s_cmp_eq_u64 vcc, 0")
        e(f"s_cbranch_scc1 {dn}")
        e(f"s_cmp_gt_u32 s7, 0x{POLL_MAX:x}")
        e(f"s_cbranch_scc1 {dn}")
        sl = self.sleep if sleep is None else sleep
        if sl:
            e(f"s_sleep {sl}")
        e(f"s_branch {lp}")
        e(f"{dn}:")
        e(f"s_mov_b64 exec, {mask if mask is not None else -1}")
        if unpack:
            for regs, va, off in loads:
                self.unpack4(regs)
        e("s_mov_b64 exec, -1")

    def poll_mp(self, loads, sbase, abase, R, mask=None, unpack=True, thr=16, slow=6):
        e = self.e
        n = len(loads)
        lp = self.label("Lmp")
        dn = self.label("Lmpdone")
        sm = [f"s[{sbase+2*k}:{sbase+2*k+1}]" for k in range(n)]
        full = mask if mask is not None else "-1"

        def issue(j):
            for k, (regs, va, off) in enumerate(loads):
                sk = self.label("Lsk")
                a = abase + (j * n + k) * 4
                e(f"s_cmp_eq_u64 {sm[k]}, 0")
                e(f"s_cbranch_scc1 {sk}")
                e(f"s_mov_b64 exec, {sm[k]}")
                e(f"buffer_load_dwordx4 a[{a}:{a+3}], {va}, s[16:19], 0 offen offset:{off} sc1")
                e(f"s_branch {sk}b")
                e(f"{sk}:")
                e(f"s_mov_b64 exec, 1")
                e(f"buffer_load_dword a{a}, {va}, s[16:19], 0 offen offset:{off} sc1")
                e(f"{sk}b:")

        e("s_mov_b32 s7, 0")
        for k in range(n):
            e(f"s_mov_b64 {sm[k]}, {full}")
        for j in range(R - 1):
            issue(j)
        e(f"{lp}:")
        for j in range(R):
            issue((j + R - 1) % R)
            e(f"s_waitcnt vmcnt({(R - 1) * n})")
            for k, (regs, va, off) in enumerate(loads):
                a = abase + (j * n + k) * 4
                w = regs
                e(f"s_mov_b64 exec, {sm[k]}")
                for i in range(4):
                    e(f"v_accvgpr_read_b32 {w[i]}, a{a+i}")
                e(f"v_xor_b32 {self.badt}, {w[1]}, {w[2]}")
                e(f"v_xor_b32 {w[3]}, {w[3]}, {w[0]}")
                e(f"v_xor_b32 {self.badt}, s6, {self.badt}")
                e(f"v_cmp_ne_u32 {sm[k]}, {w[3]}, {self.badt}")
            e("s_add_u32 s7, s7, 1")
            e(f"s_bcnt1_i32_b64 s30, {sm[0]}")
            for k in range(1, n):
                e(f"s_bcnt1_i32_b64 s31, {sm[k]}")
                e("s_add_u32 s30, s30, s31")
            e("s_cmp_eq_u32 s30, 0")
            e(f"s_cbranch_scc1 {dn}")
            sk = self.label("Lnosl")
            e(f"s_cmp_le_u32 s30, {thr}")
            e(f"s_cbranch_scc1 {sk}")
            e(f"s_sleep {slow}")
            e(f"{sk}:")
        e(f"s_cmp_gt_u32 s7, 0x{POLL_MAX:x}")
        e(f"s_cbranch_scc0 {lp}")
        e(f"{dn}:")
        e(f"s_mov_b64 exec, {full}")
        if unpack:
            for regs, va, off in loads:
                self.unpack4(regs)
        e("s_mov_b64 exec, -1")

    def poll_fast(self, loads, sbase, temps, unpack=True, trace=False):
        e = self.e
        n = len(loads)
        lp = self.label("Lpf")
        dn = self.label("Lpfdone")
        sm = [f"s[{sbase+2*k}:{sbase+2*k+1}]" for k in range(n)]
        e("s_mov_b32 s7, 0")
        e("s_sub_u32 s57, 0, s6")
        first = True
        for regs, va, off in loads:
            r0 = int(regs[0][1:])
            e(f"buffer_load_dwordx4 v[{r0}:{r0+3}], {va}, s[16:19], 0 offen offset:{off} sc1")
        e(f"s_branch {lp}w")
        e(f"{lp}:")
        for k, (regs, va, off) in enumerate(loads):
            sk = self.label("Lsk")
            r0 = int(regs[0][1:])
            e(f"s_cmp_eq_u64 {sm[k]}, 0")
            e(f"s_cbranch_scc1 {sk}")
            e(f"s_mov_b64 exec, {sm[k]}")
            e(f"buffer_load_dwordx4 v[{r0}:{r0+3}], {va}, s[16:19], 0 offen offset:{off} sc1")
            e(f"{sk}:")
        e("s_mov_b64 exec, -1")
        e(f"{lp}w:")
        for k, (regs, va, off) in enumerate(loads):
            w = regs
            e(f"s_waitcnt vmcnt(0)" if k == 0 else "s_nop 0") if k == 0 else None
            e(f"v_add3_u32 {temps[k]}, {w[0]}, {w[1]}, {w[2]}")
        for k, (regs, va, off) in enumerate(loads):
            e(f"v_add3_u32 {temps[k]}, {temps[k]}, {regs[3]}, s57")
        if trace and self.stamps:
            e("s_memrealtime s[98:99]")
            for k in range(5):
                e(f"s_mov_b32 s{80+k}, s{81+k}")
            e("s_waitcnt lgkmcnt(0)")
            e("s_mov_b32 s85, s98")
        acc = self.badt
        rest = list(temps[:n])
        if n == 1:
            e(f"v_cmp_ne_u32 vcc, 0, {rest[0]}")
        else:
            if n >= 3:
                e(f"v_or3_b32 {acc}, {rest[0]}, {rest[1]}, {rest[2]}")
                rest = rest[3:]
            else:
                e(f"v_or_b32 {acc}, {rest[0]}, {rest[1]}")
                rest = rest[2:]
            while rest:
                if len(rest) >= 2:
                    e(f"v_or3_b32 {acc}, {acc}, {rest[0]}, {rest[1]}")
                    rest = rest[2:]
                else:
                    e(f"v_or_b32 {acc}, {acc}, {rest[0]}")
                    rest = rest[1:]
            e(f"v_cmp_ne_u32 vcc, 0, {acc}")
        e("s_add_u32 s7, s7, 1")
        e(f"s_cbranch_vccz {dn}")
        for k in range(n):
            e(f"v_cmp_ne_u32 {sm[k]}, 0, {temps[k]}")
        e(f"s_cmp_gt_u32 s7, 0x{POLL_MAX:x}")
        e(f"s_cbranch_scc0 {lp}")
        e(f"{dn}:")
        if unpack:
            for regs, va, off in loads:
                self.unpack4(regs)

    def rpoll(self, loads, bad, mask=None, unpack=True, temps=None):
        if self.fast and temps is not None:
            return self.poll_fast(loads, 32, temps, unpack, trace=(len(loads) == self.trace_n))
        if self.MP and len(loads) in self.MPn:
            return self.poll_mp(loads, 32, 48, self.MP, mask, unpack, thr=self.thr, slow=self.slow)
        if self.R == 0:
            return self.poll_masked(loads, 32, mask, unpack, trace=(len(loads) == self.trace_n))
        if self.R > 1:
            self.poll_pipe(loads, bad, mask, unpack, R=self.R)
        else:
            self.poll(loads, bad, mask, unpack)

    def div448(self, dst, s, a, b):
        e = self.e
        e(f"v_mov_b32 {a}, {s}")
        e(f"v_mul_f32 {dst}, 0x{F_INV448:08x}, {a}")
        e(f"v_mov_b32 {b}, 0x{F_448:08x}")
        e(f"v_fma_f32 {a}, -{dst}, {b}, {a}")
        e(f"v_mov_b32 {b}, 0x{F_INV448:08x}")
        e(f"v_fma_f32 {dst}, {a}, {b}, {dst}")

    def ln_stats(self, f, vm, t):
        e = self.e
        e(f"v_add_f32 {t[0]}, {f[0]}, {f[1]}")
        e(f"v_add_f32 {t[1]}, {f[2]}, {f[3]}")
        e(f"v_add_f32 {t[2]}, {f[4]}, {f[5]}")
        e(f"v_add_f32 {t[3]}, {f[6]}, {f[7]}")
        e(f"v_add_f32 {t[0]}, {t[0]}, {t[1]}")
        e(f"v_add_f32 {t[2]}, {t[2]}, {t[3]}")
        e(f"v_add_f32 {t[0]}, {t[0]}, {t[2]}")
        self.wave_sum([t[0]])
        e(f"v_readlane_b32 s30, {t[0]}, 63")
        e("s_nop 1")
        self.div448(t[4], "s30", t[3], t[5])
        e(f"v_sub_f32 {t[0]}, {f[0]}, {t[4]}")
        e(f"v_mul_f32 {t[1]}, {t[0]}, {t[0]}")
        for i in range(1, 8):
            e(f"v_sub_f32 {t[0]}, {f[i]}, {t[4]}")
            e(f"v_fma_f32 {t[1]}, {t[0]}, {t[0]}, {t[1]}")
        e(f"v_mul_f32 {t[1]}, {t[1]}, {vm}")
        self.wave_sum([t[1]])
        e(f"v_readlane_b32 s30, {t[1]}, 63")
        e("s_nop 1")
        self.div448(t[2], "s30", t[3], t[5])
        self.rne(t[0], t[4])
        self.rne(t[2], t[2])
        e(f"v_add_f32 {t[2]}, 0x{F_EPS:08x}, {t[2]}")
        self.rne(t[2], t[2])
        e(f"v_sqrt_f32 {t[1]}, {t[2]}")
        e("s_nop 0")
        self.rne(t[1], t[1])
        e(f"v_rcp_f32 {t[2]}, {t[1]}")
        e("s_nop 0")

    def ln_apply(self, dst, x, t, a, b):
        e = self.e
        e(f"v_sub_f32 {a}, {x}, {t[0]}")
        self.rne(a, a)
        e(f"v_mul_f32 {b}, {a}, {t[2]}")
        e(f"v_fma_f32 {a}, -{b}, {t[1]}, {a}")
        e(f"v_fma_f32 {b}, {a}, {t[2]}, {b}")
        self.rne(dst, b)

    def unpack8(self, f, src):
        for i in range(4):
            self.e(f"v_lshlrev_b32 {f[2*i]}, 16, {src[i]}")
            self.e(f"v_and_b32 {f[2*i+1]}, 0xffff0000, {src[i]}")

    def xsum(self, regs, tmps, op="v_add_f32", swaps=("v_permlane16_swap_b32", "v_permlane32_swap_b32")):
        e = self.e
        for sw in swaps:
            for r, t in zip(regs, tmps):
                e(f"v_mov_b32 {t}, {r}")
            if len(regs) < 3:
                e("s_nop 1")
            for r, t in zip(regs, tmps):
                e(f"{sw} {r}, {t}")
            if len(regs) < 3:
                e("s_nop 1")
            for r, t in zip(regs, tmps):
                e(f"{op} {r}, {r}, {t}")

    def tag(self):
        self.e("s_mul_i32 s6, s6, 0x9E3779B1")
        self.e("s_add_u32 s6, s6, 0x7F4A7C15")
        self.e("s_or_b32 s6, s6, 1")

    def srd(self, base, p, size):
        e = self.e
        e(f"s_mov_b32 s{base}, s{p}")
        e(f"s_mov_b32 s{base+1}, s{p+1}")
        e(f"s_mov_b32 s{base+2}, 0x{size:x}")
        e(f"s_mov_b32 s{base+3}, 0x20000")

    def stream_load(self, i):
        n, half = (i % 64) >> 1, i & 1
        off = n * 2048 + half * 256
        hi, lo = off & ~4095, off & 4095
        if self.cur_so != hi:
            self.e(f"s_add_u32 s29, s28, {hi}")
            self.cur_so = hi
        slot = (i % self.NS) * 4
        srd, vo = ("s[8:11]", "v1") if i < 64 else ("s[12:15]", "v2")
        self.e(f"buffer_load_dwordx4 a[{slot}:{slot+3}], {vo}, {srd}, s29 offen offset:{lo} nt")

    def slot(self, i):
        s = (i % self.NS) * 4
        return f"a[{s}:{s+3}]"

    def build(self):
        e = self.e
        NS, W0, W = self.NS, self.W0, self.W
        self.cur_so = None
        self.badt = "v95"
        if self.stamps:
            e("s_memrealtime s[96:97]")
            for k in range(16):
                e(f"s_mov_b32 s{80+k}, 0")
        e("s_cmp_ge_u32 s2, 256")
        e("s_cbranch_scc1 L_exit")
        e("s_load_dwordx16 s[32:47], s[0:1], 0")
        e("s_load_dwordx8 s[48:55], s[0:1], 64")
        e("v_lshrrev_b32 v3, 6, v0")
        e("v_and_b32 v0, 63, v0")
        e("s_and_b32 s4, s2, 7")
        e("v_readfirstlane_b32 s3, v3")
        e("s_lshr_b32 s5, s2, 3")
        e("v_bfe_u32 v1, v0, 2, 2")
        e("v_lshlrev_b32 v1, 9, v1")
        e("v_lshrrev_b32 v4, 4, v0")
        e("v_lshl_add_u32 v1, v4, 6, v1")
        e("v_and_b32 v5, 3, v0")
        e("v_lshl_add_u32 v1, v5, 4, v1")
        e("v_and_b32 v5, 15, v0")
        e("v_lshlrev_b32 v2, 4, v5")
        e("v_lshl_add_u32 v2, v4, 9, v2")
        e("s_lshl_b32 s28, s4, 24")
        e("s_lshl_b32 s30, s5, 19")
        e("s_add_u32 s28, s28, s30")
        e("s_lshl_b32 s30, s3, 16")
        e("s_add_u32 s28, s28, s30")
        e("s_cmp_lg_u32 s3, 0")
        e("s_waitcnt lgkmcnt(0)")
        self.srd(8, 34, 0x8000000)
        e("s_cbranch_scc1 L_pref")
        self.srd(20, 32, 896)
        self.srd(24, 38, 3670016)
        e("v_lshlrev_b32 v6, 4, v0")
        e("v_lshrrev_b32 v7, 3, v0")
        e("v_lshlrev_b32 v3, 13, v7")
        e("v_and_b32 v5, 7, v0")
        e("v_lshl_add_u32 v3, v5, 4, v3")
        e("s_and_b32 s72, s5, 3")
        e("s_lshr_b32 s73, s5, 2")
        e(f"s_mul_i32 s74, s72, {112*8192}")
        e("s_lshl_b32 s30, s4, 10")
        e("s_add_u32 s74, s74, s30")
        e("s_lshl_b32 s30, s73, 7")
        e("s_add_u32 s74, s74, s30")
        e("buffer_load_dwordx4 v[16:19], v6, s[20:23], 0 offen")
        for i in range(14):
            e(f"s_add_u32 s30, s74, {i*65536}")
            e(f"buffer_load_dwordx4 v[{32+4*i}:{35+4*i}], v3, s[24:27], s30 offen")
        e("s_load_dword s6, s[54:55], 0")
        for i in range(W0):
            self.stream_load(i)
        self.common_consts()
        self.stamp(14, "s96")
        self.stamp(0)
        e("v_cmp_gt_u32 vcc, 56, v0")
        e("v_mov_b32 v22, 0")
        e("v_mov_b32 v23, 1.0")
        e("v_cndmask_b32 v22, v22, v23, vcc")
        e(f"s_waitcnt vmcnt({14 + W0})")
        f = V(8, 8)
        self.unpack8(f, V(16, 4))
        self.ln_stats(f, "v22", V(88, 6))
        for j in range(8):
            self.ln_apply(f[j], f[j], V(88, 6), "v94", "v95")
        e("s_mov_b32 s30, 0x07060302")
        for j in range(4):
            e(f"v_perm_b32 v{4+j}, v{9+2*j}, v{8+2*j}, s30")
        e("v_lshlrev_b32 v24, 4, v0")
        e(f"v_add_u32 v24, {LDS_PRIV}, v24")
        e("ds_write_b128 v24, v[4:7]")
        e("s_mul_i32 s30, s72, 224")
        e(f"s_add_u32 s30, s30, {LDS_PRIV}")
        e("v_lshrrev_b32 v3, 3, v0")
        e("v_lshlrev_b32 v3, 1, v3")
        e("v_add_u32 v3, s30, v3")
        e("s_waitcnt lgkmcnt(0)")
        for i in range(14):
            e(f"ds_read_u16 v{16+i}, v3 offset:{16*i}")
        self.tag()
        for i in range(14):
            e(f"s_waitcnt vmcnt({13 - i + W0}) lgkmcnt({13 - i})")
            e(f"v_lshlrev_b32 v{30+(i&1)}, 16, v{16+i}")
            for d in range(4):
                w = 32 + 4 * i + d
                e(f"v_dot2_f32_bf16 v{8+2*d}, v{w}, v{16+i}, {'0' if i == 0 else 'v%d' % (8+2*d)}")
                e(f"v_dot2_f32_bf16 v{9+2*d}, v{w}, v{30+(i&1)}, {'0' if i == 0 else 'v%d' % (9+2*d)}")
        self.stamp(10)
        e("s_nop 2")
        for j in range(8):
            e(f"v_add_f32_dpp v{8+j}, v{8+j}, v{8+j} row_ror:8 row_mask:0xf bank_mask:0xf")
        self.xsum(V(8, 8), V(16, 8))
        for j in range(8):
            e(f"v_add_u32 v{8+j}, 0x80, v{8+j}")
        e("s_mov_b32 s64, 0xff00ff00")
        e("s_mov_b32 s65, 0xff00ff00")
        for j in range(4):
            e(f"v_cndmask_b32 v{8+j}, v{8+j}, v{12+j}, s[64:65]")
        self.pack4(V(32, 4), V(8, 4))
        e("s_lshl_b32 s30, s4, 13")
        e(f"s_add_u32 s75, s30, {WS_QX}")
        e("s_lshl_b32 s30, s72, 11")
        e("s_lshl_b32 s31, s73, 8")
        e("s_add_u32 s30, s30, s31")
        e("s_add_u32 s30, s30, s75")
        e("v_lshlrev_b32 v4, 4, v0")
        e("v_add_u32 v4, s30, v4")
        self.srd(16, 54, WS_SIZE)
        e("s_mov_b64 exec, 0xffff")
        e("buffer_store_dwordx4 v[32:35], v4, s[16:19], 0 offen sc1")
        e("s_mov_b64 exec, -1")
        self.stamp(1)
        if self.w0early:
            self.srd(12, 36, 0x8000000)
            for i in range(W0, NS):
                self.stream_load(i)
        e("v_lshlrev_b32 v3, 4, v0")
        e("v_add_u32 v4, s75, v3")
        e("v_add_u32 v5, 4096, v4")
        loads = []
        for b in range(4):
            for i in range(2):
                loads.append((V(40 + 8 * b + 4 * i, 4), "v4" if b < 2 else "v5", (b & 1) * 2048 + i * 1024))
        if self.fast:
            self.poll_fast(loads, 64, V(72, 8))
        elif self.R == 0:
            self.poll_masked(loads, 64, presleep=self.qsleep)
        else:
            self.poll(loads, "v6")
        self.stamp(13)
        for b in range(4):
            for i in range(2):
                for j in range(3):
                    e(f"v_and_b32 v{40+8*b+4*i+j}, 0xffffff00, v{40+8*b+4*i+j}")
        for k in range(8):
            e(f"v_add_f32 v{40+k}, v{40+k}, v{48+k}")
            e(f"v_add_f32 v{56+k}, v{56+k}, v{64+k}")
        for k in range(8):
            e(f"v_add_f32 v{40+k}, v{40+k}, v{56+k}")
        for k in range(4):
            e(f"v_cvt_pk_bf16_f32 v{48+k}, v{40+2*k}, v{41+2*k}")
        e("v_lshrrev_b32 v3, 4, v0")
        e("v_lshlrev_b32 v3, 7, v3")
        e("v_and_b32 v4, 7, v0")
        e("v_lshl_add_u32 v3, v4, 4, v3")
        e("v_bfe_u32 v4, v0, 3, 1")
        e("v_lshl_add_u32 v3, v4, 3, v3")
        e(f"v_add_u32 v3, {LDS_Q}, v3")
        e("ds_write_b64 v3, v[48:49]")
        e("ds_write_b64 v3, v[50:51] offset:512")
        if not self.w0early:
            self.srd(12, 36, 0x8000000)
            for i in range(W0, NS):
                self.stream_load(i)
        e("s_branch L_qready")
        e("L_pref:")
        self.cur_so = None
        for i in range(W0):
            self.stream_load(i)
        e("s_load_dword s6, s[54:55], 0")
        self.srd(12, 36, 0x8000000)
        self.srd(16, 54, WS_SIZE)
        self.common_consts()
        self.stamp(14, "s96")
        self.stamp(0)
        for i in range(W0, NS):
            e(f"s_waitcnt vmcnt({W - 1})")
            self.stream_load(i)
        e("s_waitcnt lgkmcnt(0)")
        self.tag()
        e("L_qready:")
        e("v_and_b32 v5, 1, v0")
        e("v_mov_b32 v6, 0xffff")
        e("v_lshlrev_b32 v5, 4, v5")
        e("v_lshlrev_b32 v6, v5, v6")
        e("v_bfe_u32 v7, v0, 1, 2")
        for jj in range(4):
            e(f"v_cmp_eq_u32 vcc, {jj}, v7")
            e("s_nop 1")
            e(f"v_cndmask_b32 v{64+jj}, 0, v6, vcc")
        e("v_mov_b32 v84, 0xff800000")
        e("v_bfe_u32 v3, v0, 3, 1")
        e("v_lshlrev_b32 v3, 9, v3")
        e("v_lshrrev_b32 v4, 4, v0")
        e("v_lshl_add_u32 v3, v4, 6, v3")
        e("v_and_b32 v5, 3, v0")
        e("v_lshl_add_u32 v3, v5, 4, v3")
        e(f"v_add_u32 v3, {LDS_Q}, v3")
        e("s_waitcnt lgkmcnt(0)")
        e("s_barrier")
        self.stamp(2)
        e("ds_read_b128 v[8:11], v3")
        e("ds_read_b128 v[12:15], v3 offset:256")
        e("v_lshrrev_b32 v4, 5, v0")
        e("v_lshlrev_b32 v88, 10, v4")
        e("v_and_b32 v5, 15, v0")
        e("v_lshl_add_u32 v88, v5, 5, v88")
        e("v_bfe_u32 v5, v0, 4, 1")
        e("v_lshl_add_u32 v88, v5, 4, v88")
        e("s_lshl_b32 s30, s3, 11")
        e(f"s_add_u32 s30, s30, {LDS_O}")
        e("v_add_u32 v88, s30, v88")
        e("v_bfe_u32 v5, v0, 3, 1")
        e("v_lshlrev_b32 v89, 6, v5")
        e("s_lshl_b32 s30, s3, 3")
        e(f"s_add_u32 s30, s30, {LDS_ML}")
        e("v_add_u32 v89, s30, v89")
        e("s_lshr_b32 s69, s4, 1")
        e("s_lshl_b32 s30, s5, 2")
        e("s_add_u32 s69, s69, s30")
        e("s_mov_b32 s68, 0")
        e("s_and_b32 s30, s4, 1")
        if self.split2:
            lab = self.label("Lrole")
            e("s_mov_b32 s68, 0")
            e("s_and_b32 s30, s4, 1")
            e("s_cmp_lg_u32 s30, 0")
            e(f"s_cbranch_scc1 {lab}")
            e("s_lshr_b32 s30, s4, 1")
            e("s_cmp_ge_u32 s30, 2")
            e(f"s_cbranch_scc1 {lab}s2")
            e("s_cmp_ge_u32 s5, 28")
            e(f"s_cbranch_scc1 {lab}")
            e("s_mov_b32 s68, 2")
            e("s_mul_i32 s69, s30, 28")
            e("s_add_u32 s69, s69, s5")
            e(f"s_branch {lab}")
            e(f"{lab}s2:")
            e("s_mov_b32 s68, 1")
            e("s_sub_u32 s69, s30, 2")
            e("s_lshl_b32 s69, s69, 5")
            e("s_add_u32 s69, s69, s5")
            e(f"{lab}:")
        elif self.local1:
            lab = self.label("Lrole")
            e("s_lshl_b32 s69, s4, 3")
            e("s_add_u32 s69, s69, s5")
            e("s_mov_b32 s68, 1")
            e("s_cmp_lt_u32 s5, 8")
            e(f"s_cbranch_scc1 {lab}")
            e("s_mov_b32 s68, 0")
            e("s_and_b32 s30, s4, 1")
            e("s_cmp_lg_u32 s30, 0")
            e(f"s_cbranch_scc1 {lab}")
            e("s_cmp_ge_u32 s5, 22")
            e(f"s_cbranch_scc1 {lab}")
            e("s_mov_b32 s68, 2")
            e("s_sub_u32 s69, s5, 8")
            e("s_lshl_b32 s69, s69, 2")
            e("s_lshr_b32 s30, s4, 1")
            e("s_add_u32 s69, s69, s30")
            e(f"{lab}:")
        elif self.s3_odd:
            e("s_cmp_eq_u32 s30, 0")
            e("s_cselect_b32 s31, 64, 56")
            e("s_cselect_b32 s30, 1, 2")
            e("s_cmp_lt_u32 s69, s31")
            e("s_cselect_b32 s68, s30, 0")
        else:
            lab = self.label("Lrole")
            e("s_cmp_eq_u32 s30, 0")
            e(f"s_cbranch_scc0 {lab}")
            e("s_cmp_lt_u32 s69, 120")
            e("s_cselect_b32 s68, 2, 0")
            e("s_cmp_lt_u32 s69, 64")
            e("s_cselect_b32 s68, 1, s68")
            e("s_cmp_eq_u32 s68, 2")
            e("s_cselect_b32 s30, 64, 0")
            e("s_sub_u32 s69, s69, s30")
            if self.s2grp:
                e("s_lshr_b32 s30, s4, 1")
                e("s_lshl_b32 s30, s30, 4")
                e("s_add_u32 s30, s30, s5")
                e("s_cmp_eq_u32 s68, 1")
                e("s_cselect_b32 s69, s30, s69")
            e(f"{lab}:")
        e("s_waitcnt lgkmcnt(0)")

        issued = NS

        def post_k(n):
            d = 16 + (n % 4) * 4
            t = 32 + n
            e(f"v_mov_b32_dpp v{t}, v{d} quad_perm:[0,0,0,0] row_mask:0xf bank_mask:0xf")
            e(f"v_add_f32_dpp v{t}, v{d+1}, v{t} quad_perm:[1,1,1,1] row_mask:0xf bank_mask:0xf")
            e(f"v_add_f32_dpp v{t}, v{d+2}, v{t} quad_perm:[2,2,2,2] row_mask:0xf bank_mask:0xf")
            e(f"v_add_f32_dpp v{t}, v{d+3}, v{t} quad_perm:[3,3,3,3] row_mask:0xf bank_mask:0xf")
            e(f"v_max_f32 v84, v84, v{t}")

        for n in range(32):
            i = 2 * n
            e(f"s_waitcnt vmcnt({issued - i - 2})")
            d = 16 + (n % 4) * 4
            e(f"v_mfma_f32_16x16x32_bf16 v[{d}:{d+3}], {self.slot(i)}, v[8:11], 0")
            e(f"v_mfma_f32_16x16x32_bf16 v[{d}:{d+3}], {self.slot(i+1)}, v[12:15], v[{d}:{d+3}]")
            for k in range(2):
                if issued < 128:
                    self.stream_load(issued)
                    issued += 1
            if n >= 2:
                post_k(n - 2)
        e("s_nop 7")
        post_k(30)
        post_k(31)
        self.stamp(3)
        self.xsum(["v84"], ["v85"], op="v_max_f32")
        self.rne("v84", "v84")
        e("v_mov_b32 v86, 0")
        e("v_mov_b32 v87, 0")
        for m in range(16):
            a, b = 32 + 2 * m, 33 + 2 * m
            e(f"v_cvt_pk_bf16_f32 v85, v{a}, v{b}")
            e(f"v_lshlrev_b32 v{a}, 16, v85")
            e(f"v_and_b32 v{b}, 0xffff0000, v85")
            e(f"v_sub_f32 v{a}, v{a}, v84")
            e(f"v_sub_f32 v{b}, v{b}, v84")
            e(f"v_mul_f32 v{a}, s63, v{a}")
            e(f"v_mul_f32 v{b}, s63, v{b}")
            e(f"v_exp_f32 v{a}, v{a}")
            e(f"v_exp_f32 v{b}, v{b}")
            e("s_nop 0")
            e(f"v_add_f32 v86, v86, v{a}")
            e(f"v_add_f32 v87, v87, v{b}")
        e("v_add_f32 v86, v86, v87")
        self.xsum(["v86"], ["v85"])
        e("v_mov_b32 v90, v84")
        e("v_mov_b32 v91, v86")
        e("s_mov_b64 exec, 0x101")
        e("ds_write_b64 v89, v[90:91]")
        e("s_mov_b64 exec, -1")

        if self.dma_mid:
            sk = self.label("Lmid")
            e("s_cmp_lg_u32 s68, 1")
            e(f"s_cbranch_scc1 {sk}")
            self.role_dma()
            e(f"{sk}:")
        def build_a(n):
            a = 68 + (n % 2) * 4
            e(f"v_cvt_pk_bf16_f32 v85, v{32+n}, v{32+n}")
            for jj in range(4):
                e(f"v_and_b32 v{a+jj}, v85, v{64+jj}")

        build_a(0)
        for n in range(32):
            i = 64 + 2 * n
            if n + 1 < 32:
                build_a(n + 1)
            e(f"s_waitcnt vmcnt({issued - i - 2})")
            a = 68 + (n % 2) * 4
            c0 = "0" if n == 0 else "v[76:79]"
            c1 = "0" if n == 0 else "v[80:83]"
            e(f"v_mfma_f32_16x16x32_bf16 v[76:79], v[{a}:{a+3}], {self.slot(i)}, {c0}")
            e(f"v_mfma_f32_16x16x32_bf16 v[80:83], v[{a}:{a+3}], {self.slot(i+1)}, {c1}")
            for k in range(2):
                if issued < 128:
                    self.stream_load(issued)
                    issued += 1
        self.stamp(4)
        e("v_lshlrev_b32 v3, 4, v0")
        e("s_lshl_b32 s30, s3, 10")
        e(f"s_add_u32 s31, s30, {LDS_O}")
        e("v_add_u32 v4, s31, v3")
        e("s_lshl_b32 s30, s3, 6")
        e(f"s_add_u32 s30, s30, {LDS_ML}")
        e("v_mov_b32 v5, s30")
        e("s_nop 1")
        e("ds_write_b128 v88, v[76:79]")
        e("ds_write_b128 v88, v[80:83] offset:512")
        if not self.dma_late:
            self.role_dma()
        e("s_waitcnt lgkmcnt(0)")
        e("s_barrier")
        e("s_cmp_gt_u32 s3, 1")
        e("s_cbranch_scc1 L_pub_done")
        for k in range(4):
            e(f"ds_read_b128 v[{16+4*k}:{19+4*k}], v5 offset:{16*k}")
        for wv in range(8):
            e(f"ds_read_b128 v[{32+4*wv}:{35+4*wv}], v4 offset:{2048*wv}")
        e("s_lshl_b32 s30, s4, 1")
        e("s_add_u32 s30, s30, s3")
        e("s_lshl_b32 s30, s30, 5")
        e("s_add_u32 s30, s30, s5")
        e(f"s_mul_i32 s31, s30, {PO_BLK}")
        e(f"s_add_u32 s31, s31, {WS_PO}")
        e("v_add_u32 v4, s31, v3")
        e("s_waitcnt lgkmcnt(8)")
        e("v_max3_f32 v8, v16, v18, v20")
        e("v_max3_f32 v9, v22, v24, v26")
        e("v_max3_f32 v8, v8, v28, v30")
        e("v_max_f32 v8, v8, v9")
        for wv in range(8):
            e(f"v_sub_f32 v{16+2*wv}, v{16+2*wv}, v8")
        for wv in range(8):
            e(f"v_mul_f32 v{16+2*wv}, s63, v{16+2*wv}")
        for wv in range(8):
            e(f"v_exp_f32 v{16+2*wv}, v{16+2*wv}")
        e("s_waitcnt lgkmcnt(0)")
        for j in range(4):
            e(f"v_mul_f32 v{12+j}, v16, v{32+j}")
        e("v_mul_f32 v9, v16, v17")
        for wv in range(1, 8):
            for j in range(4):
                e(f"v_fma_f32 v{12+j}, v{16+2*wv}, v{32+4*wv+j}, v{12+j}")
            e(f"v_fma_f32 v9, v{16+2*wv}, v{17+2*wv}, v9")
        e("v_mov_b32 v10, 0")
        self.pack4(V(68, 4), ["v9", "v10", "v10", "v8"])
        self.pack4(V(64, 4), V(12, 4))
        fl = "" if self.local1 else " sc1"
        e(f"buffer_store_dwordx4 v[64:67], v4, s[16:19], 0 offen{fl}")
        e("s_mov_b64 exec, 1")
        e(f"buffer_store_dwordx4 v[68:71], v4, s[16:19], 0 offen offset:1024{fl}")
        e("s_mov_b64 exec, -1")
        e("L_pub_done:")
        self.stamp(5)
        e("s_cmp_eq_u32 s68, 0")
        e("s_cbranch_scc1 L_end")
        if self.dma_late:
            if self.dma_mid:
                sk = self.label("Lmid")
                e("s_cmp_eq_u32 s68, 1")
                e(f"s_cbranch_scc1 {sk}")
                self.role_dma()
                e(f"{sk}:")
            else:
                self.role_dma()
        e("s_cmp_eq_u32 s68, 2")
        e("s_cbranch_scc1 L_s3")
        self.s2()
        e("s_branch L_end")
        e("L_s3:")
        self.s3()
        e("L_end:")
        self.stamp_flush()
        e("L_exit:")
        e("s_endpgm")

    def common_consts(self):
        e = self.e
        e("s_mov_b32 s58, 0x07060501")
        e("s_mov_b32 s59, 0x07060502")
        e("s_mov_b32 s60, 0x07060503")
        e("s_mov_b32 s61, 0x0c04000c")
        e("s_mov_b32 s62, 0x04020100")
        e(f"s_mov_b32 s63, 0x{CEXP:08x}")

    def role_dma(self):
        e = self.e
        done = self.label("Ldma_done")
        s3l = self.label("Ldma_s3")
        e("s_cmp_eq_u32 s68, 0")
        e(f"s_cbranch_scc1 {done}")
        e("s_lshl_b32 s30, s3, 6")
        e("v_add_u32 v10, s30, v0")
        e("s_lshl_b32 s71, s3, 10")
        e("s_cmp_eq_u32 s68, 2")
        e(f"s_cbranch_scc1 {s3l}")
        self.srd(20, 40, 3670016)
        e("s_lshr_b32 s30, s69, 2")
        e(f"s_mul_i32 s30, s30, {256 * 896}")
        e("s_and_b32 s31, s69, 3")
        e("s_mul_i32 s31, s31, 224")
        e("s_add_u32 s70, s30, s31")
        e("s_movk_i32 s31, 18725")
        for t in range(7):
            e(f"v_add_u32 v11, {t*512}, v10")
            e("v_mul_lo_u32 v12, v11, s31")
            e("v_lshrrev_b32 v12, 18, v12")
            e("v_mul_u32_u24 v13, 14, v12")
            e("v_sub_u32 v13, v11, v13")
            e("v_mul_u32_u24 v12, 0x380, v12")
            e("v_lshl_add_u32 v12, v13, 4, v12")
            e(f"s_add_u32 m0, s71, {LDS_W + t*8192}")
            e("s_nop 0")
            e("buffer_load_dwordx4 v12, s[20:23], s70 offen nt lds")
        e(f"s_branch {done}")
        e(f"{s3l}:")
        e("v_lshrrev_b32 v11, 2, v10")
        e("v_mul_u32_u24 v11, 0xe00, v11")
        e("v_and_b32 v12, 3, v10")
        e("v_lshl_add_u32 v11, v12, 4, v11")
        e("s_lshl_b32 s70, s69, 6")
        for mtx, p in ((0, 44), (1, 46)):
            self.srd(20, p, 1605632)
            for t in range(4):
                lab = None
                if t == 3:
                    lab = self.label("Lskip")
                    e("s_cmp_gt_u32 s3, 3")
                    e(f"s_cbranch_scc1 {lab}")
                e(f"s_add_u32 s30, s70, {t*128*3584}")
                e(f"s_add_u32 m0, s71, {LDS_W + mtx*28672 + t*8192}")
                e("s_nop 0")
                e("buffer_load_dwordx4 v11, s[20:23], s30 offen nt lds")
                if lab:
                    e(f"{lab}:")
        self.srd(20, 48, 1605632)
        e("v_lshlrev_b32 v11, 4, v10")
        e("s_mul_i32 s70, s69, 28672")
        for t in range(4):
            lab = None
            if t == 3:
                lab = self.label("Lskip")
                e("s_cmp_gt_u32 s3, 3")
                e(f"s_cbranch_scc1 {lab}")
            e(f"s_add_u32 s30, s70, {t*8192}")
            e(f"s_add_u32 m0, s71, {LDS_W + 57344 + t*8192}")
            e("s_nop 0")
            e("buffer_load_dwordx4 v11, s[20:23], s30 offen nt lds")
            if lab:
                e(f"{lab}:")
        e(f"{done}:")

    def s2(self):
        e = self.e
        e("s_lshr_b32 s72, s69, 2")
        e(f"s_mul_i32 s30, s72, {32 * PO_BLK}")
        e(f"s_add_u32 s30, s30, {WS_PO}")
        e("v_and_b32 v7, 31, v0")
        e(f"v_mul_u32_u24 v7, {PO_BLK}, v7")
        e("v_add_u32 v7, s30, v7")
        e(f"s_mul_i32 s31, s3, {4 * PO_BLK}")
        e("s_add_u32 s30, s30, s31")
        e("v_lshlrev_b32 v5, 4, v0")
        e("v_add_u32 v6, s30, v5")
        e(f"v_add_u32 v9, {2 * PO_BLK}, v6")
        e("v_bfe_u32 v3, v0, 2, 2")
        e("v_lshrrev_b32 v4, 4, v0")
        e("v_lshl_add_u32 v3, v4, 3, v3")
        e("v_mul_u32_u24 v3, 224, v3")
        e("v_and_b32 v4, 3, v0")
        e("v_lshl_add_u32 v3, v4, 3, v3")
        e("s_lshl_b32 s30, s3, 5")
        e(f"s_add_u32 s30, s30, {LDS_W}")
        e("v_add_u32 v3, s30, v3")
        e("s_lshl_b32 s30, s3, 10")
        e(f"s_add_u32 s31, s30, {LDS_O}")
        e("v_add_u32 v72, s31, v5")
        e(f"v_add_u32 v73, {LDS_O}, v5")
        e(f"s_add_u32 s31, s30, {LDS_PRIV}")
        e("v_lshlrev_b32 v74, 3, v0")
        e("v_add_u32 v74, s31, v74")
        e("v_lshrrev_b32 v75, 4, v0")
        e("v_lshlrev_b32 v76, 4, v75")
        e("v_add_u32 v76, s31, v76")
        e("s_and_b32 s30, s69, 3")
        e("s_mul_i32 s30, s30, 448")
        e("s_lshl_b32 s31, s3, 6")
        e("s_add_u32 s30, s30, s31")
        e(f"s_mul_i32 s31, s72, {self.YS}")
        e("s_add_u32 s30, s30, s31")
        e(f"s_add_u32 s30, s30, {WS_Y}")
        e("v_lshlrev_b32 v77, 2, v0")
        e("v_add_u32 v77, s30, v77")
        self.pack_dw_consts("v78", "v79", 66)
        e("s_waitcnt vmcnt(0)")
        e("s_barrier")
        e("s_cmp_gt_u32 s3, 6")
        e("s_cbranch_scc1 L_s2_now")
        for s in range(8):
            e(f"ds_read_b64_tr_b16 a[{4*s}:{4*s+1}], v3 offset:{s*7168}")
            e(f"ds_read_b64_tr_b16 a[{4*s+2}:{4*s+3}], v3 offset:{s*7168 + 896}")
        e("L_s2_now:")
        self.stamp(12)
        self.rpoll([(V(48, 4), "v7", 1024), (V(32, 4), "v6", 0), (V(36, 4), "v6", PO_BLK), (V(40, 4), "v9", 0),
                    (V(44, 4), "v9", PO_BLK)], "v8", unpack=False, temps=V(52, 5))
        self.stamp(15, "s7")
        self.stamp(6)
        self.unpack4(V(48, 4))
        e("v_mov_b32 v9, v51")
        self.unpack4(V(32, 4))
        e("v_max_f32_dpp v9, v9, v9 quad_perm:[1,0,3,2] row_mask:0xf bank_mask:0xf")
        self.unpack4(V(36, 4))
        e("v_max_f32_dpp v9, v9, v9 quad_perm:[2,3,0,1] row_mask:0xf bank_mask:0xf")
        self.unpack4(V(40, 4))
        e("v_max_f32_dpp v9, v9, v9 row_half_mirror row_mask:0xf bank_mask:0xf")
        self.unpack4(V(44, 4))
        e("v_max_f32_dpp v9, v9, v9 row_mirror row_mask:0xf bank_mask:0xf")
        e("s_lshl_b32 s30, s3, 2")
        e("v_mov_b32 v10, v9")
        e("s_nop 1")
        e("v_permlane16_swap_b32 v9, v10")
        e("s_nop 1")
        e("v_max_f32 v9, v9, v10")
        e("v_sub_f32 v10, v51, v9")
        e("v_mul_f32 v10, s63, v10")
        e("v_exp_f32 v10, v10")
        e("s_add_u32 s31, s30, 1")
        e("s_add_u32 s29, s30, 2")
        e("s_add_u32 s28, s30, 3")
        e("v_readlane_b32 s74, v10, s30")
        e("v_readlane_b32 s75, v10, s31")
        e("v_readlane_b32 s76, v10, s29")
        e("v_readlane_b32 s77, v10, s28")
        e("v_mul_f32 v11, v10, v48")
        for j in range(4):
            e(f"v_mul_f32 v{12+j}, s74, v{32+j}")
        for k in range(1, 4):
            for j in range(4):
                e(f"v_fma_f32 v{12+j}, s{74+k}, v{32+4*k+j}, v{12+j}")
        e("ds_write_b128 v72, v[12:15]")
        e("v_add_f32_dpp v11, v11, v11 quad_perm:[1,0,3,2] row_mask:0xf bank_mask:0xf")
        e("s_nop 1")
        e("v_add_f32_dpp v11, v11, v11 quad_perm:[2,3,0,1] row_mask:0xf bank_mask:0xf")
        e("s_waitcnt lgkmcnt(0)")
        e("s_barrier")
        e("s_cmp_gt_u32 s3, 6")
        e("s_cbranch_scc1 L_end")
        for wv in range(8):
            e(f"ds_read_b128 v[{32+4*wv}:{35+4*wv}], v73 offset:{1024*wv}")
        e("v_add_f32_dpp v11, v11, v11 row_half_mirror row_mask:0xf bank_mask:0xf")
        e("s_nop 1")
        e("v_add_f32_dpp v11, v11, v11 row_mirror row_mask:0xf bank_mask:0xf")
        e("s_nop 0")
        e("v_mov_b32 v10, v11")
        e("s_nop 1")
        e("v_permlane16_swap_b32 v11, v10")
        e("s_nop 1")
        e("v_add_f32 v11, v11, v10")
        e("v_rcp_f32 v10, v11")
        for pair in range(4):
            e(f"s_waitcnt lgkmcnt({6 - 2*pair})")
            for j in range(4):
                e(f"v_add_f32 v{32+8*pair+j}, v{32+8*pair+j}, v{36+8*pair+j}")
        for j in range(4):
            e(f"v_add_f32 v{32+j}, v{32+j}, v{40+j}")
            e(f"v_add_f32 v{48+j}, v{48+j}, v{56+j}")
        e("v_fma_f32 v9, -v10, v11, 1.0")
        e("v_fma_f32 v10, v9, v10, v10")
        for j in range(4):
            e(f"v_add_f32 v{32+j}, v{32+j}, v{48+j}")
        for j in range(4):
            e(f"v_mul_f32 v{32+j}, v{32+j}, v10")
        e("v_cvt_pk_bf16_f32 v12, v32, v33")
        e("v_cvt_pk_bf16_f32 v13, v34, v35")
        e("ds_write_b64 v74, v[12:13]")
        e("s_waitcnt lgkmcnt(0)")
        for s in range(8):
            e(f"ds_read_b128 v[{32+4*s}:{35+4*s}], v76 offset:{64*s}")
        for s in range(8):
            e(f"s_waitcnt lgkmcnt({7-s})")
            c = "0" if s == 0 else "v[16:19]"
            e(f"v_mfma_f32_16x16x32_bf16 v[16:19], v[{32+4*s}:{35+4*s}], a[{4*s}:{4*s+3}], {c}")
        e("s_nop 7")
        self.pack_dw("v24", "v16", "v25", "v78", "v79", "s[66:67]")
        e("s_mov_b64 exec, 0xffff")
        e("buffer_store_dword v24, v77, s[16:19], 0 offen sc1")
        e("s_mov_b64 exec, -1")
        self.stamp(7)

    def s3(self):
        e = self.e
        self.srd(24, 32, 896)
        e("v_and_b32 v9, 15, v0")
        e("s_lshl_b32 s30, s3, 7")
        e("v_lshl_add_u32 v5, v9, 3, s30")
        e("buffer_load_dwordx2 v[84:85], v5, s[24:27], 0 offen")
        e(f"v_add_u32 v86, {LDS_H}, v5")
        e("v_lshrrev_b32 v4, 4, v0")
        e(f"v_mul_u32_u24 v8, {4*self.YS}, v4")
        e("v_lshl_add_u32 v8, v9, 4, v8")
        e("s_lshl_b32 s30, s3, 8")
        e(f"s_add_u32 s30, s30, {WS_Y}")
        e("v_add_u32 v8, s30, v8")
        e(f"v_add_u32 v10, {2*self.YS}, v8")
        e("v_bfe_u32 v3, v0, 2, 2")
        e("v_lshl_add_u32 v3, v4, 3, v3")
        e("v_lshlrev_b32 v6, 6, v3")
        e("v_and_b32 v11, 3, v0")
        e("v_lshl_add_u32 v6, v11, 3, v6")
        e("s_and_b32 s30, s3, 1")
        e("s_mul_i32 s30, s30, 28672")
        e("s_bfe_u32 s31, s3, 0x10001")
        e("s_lshl_b32 s31, s31, 5")
        e("s_add_u32 s30, s30, s31")
        e("s_lshr_b32 s31, s3, 2")
        e(f"s_mul_i32 s31, s31, {7 * 2048}")
        e("s_add_u32 s30, s30, s31")
        e(f"s_add_u32 s30, s30, {LDS_W}")
        e("v_add_u32 v6, s30, v6")
        e("v_mul_u32_u24 v7, 0x380, v3")
        e("v_lshl_add_u32 v7, v11, 3, v7")
        e("s_lshl_b32 s30, s3, 7")
        e(f"s_add_u32 s30, s30, {LDS_W + 57344}")
        e("v_add_u32 v7, s30, v7")
        e("s_lshr_b32 s30, s3, 2")
        e("s_lshl_b32 s30, s30, 8")
        e("s_and_b32 s31, s3, 1")
        e("s_lshl_b32 s31, s31, 7")
        e("s_add_u32 s30, s30, s31")
        e("s_bfe_u32 s31, s3, 0x10001")
        e("s_lshl_b32 s31, s31, 6")
        e("s_add_u32 s30, s30, s31")
        e(f"s_add_u32 s30, s30, {LDS_GU}")
        e("v_lshlrev_b32 v87, 4, v4")
        e("v_lshl_add_u32 v88, v9, 2, s30")
        e("s_lshr_b32 s30, s3, 2")
        e("s_mul_i32 s30, s30, 448")
        e(f"s_add_u32 s30, s30, {LDS_H}")
        e("v_add_u32 v89, s30, v87")
        e("v_and_b32 v11, 31, v0")
        e("v_lshlrev_b32 v90, 2, v11")
        e(f"v_add_u32 v90, {LDS_GU}, v90")
        e("s_lshl_b32 s31, s3, 10")
        e(f"s_add_u32 s31, s31, {LDS_PRIV}")
        e("v_lshlrev_b32 v91, 1, v11")
        e("v_add_u32 v91, s31, v91")
        e("v_add_u32 v92, s31, v87")
        e(f"s_mul_i32 s30, s69, {self.ZS}")
        e("s_lshl_b32 s31, s3, 8")
        e("s_add_u32 s30, s30, s31")
        e(f"s_add_u32 s30, s30, {WS_Z}")
        e("v_lshl_add_u32 v93, v0, 2, s30")
        self.pack_dw_consts("v60", "v61", 46)
        e("s_lshl_b32 s30, s3, 3")
        e(f"s_add_u32 s30, s30, {LDS_ST}")
        e("v_mov_b32 v63, s30")
        e("v_mov_b32 v40, 0")
        e("v_mov_b32 v41, 0")
        e("s_mov_b64 exec, 1")
        e("ds_write_b64 v63, v[40:41]")
        e("s_mov_b64 exec, -1")
        e("v_lshrrev_b32 v62, 3, v0")
        e(f"v_mul_u32_u24 v62, {self.ZS}, v62")
        e("v_and_b32 v12, 7, v0")
        e("v_lshl_add_u32 v62, v12, 4, v62")
        e("s_lshr_b32 s30, s69, 2")
        e("s_lshl_b32 s30, s30, 7")
        e(f"s_add_u32 s30, s30, {WS_Z}")
        e("v_add_u32 v62, s30, v62")
        if self.warm:
            e("s_cmp_lg_u32 s3, 7")
            e("s_cbranch_scc1 L_s3_nowarm")
            e("s_and_b32 s30, s69, 3")
            e("s_cmp_lg_u32 s30, 0")
            e("s_cbranch_scc1 L_s3_nowarm")
            for i in range(7):
                e(f"s_mov_b32 s30, {i*8*self.ZS}")
                e(f"buffer_load_dwordx4 v[32:35], v62, s[16:19], s30 offen sc1")
            e("L_s3_nowarm:")
        e("s_waitcnt vmcnt(0)")
        e("s_barrier")
        for s in range(7):
            e(f"ds_read_b64_tr_b16 a[{4*s}:{4*s+1}], v6 offset:{s*2048}")
            e(f"ds_read_b64_tr_b16 a[{4*s+2}:{4*s+3}], v6 offset:{s*2048 + 256}")
        e("s_cmp_gt_u32 s3, 6")
        e("s_cbranch_scc1 L_s3_notr")
        for t in range(4):
            e(f"ds_read_b64_tr_b16 a[{32+4*t}:{33+4*t}], v7 offset:{t*32}")
            e(f"ds_read_b64_tr_b16 a[{34+4*t}:{35+4*t}], v7 offset:{t*32 + 3584}")
        e("L_s3_notr:")
        for j in range(4):
            e(f"v_mov_b32 v{20+j}, 0x3f803f80")
        e("s_waitcnt lgkmcnt(0)")
        for s in range(7):
            c = "0" if s == 0 else "v[16:19]"
            e(f"v_mfma_f32_16x16x32_bf16 v[16:19], v[20:23], a[{4*s}:{4*s+3}], {c}")
        e("s_nop 7")
        e("s_mov_b64 exec, 0xffff")
        e("ds_write_b32 v88, v16 offset:512")
        e("s_mov_b64 exec, -1")
        e("s_waitcnt lgkmcnt(0)")
        e("s_barrier")
        e("ds_read_b32 v16, v90 offset:512")
        e("ds_read_b32 v17, v90 offset:768")
        e("ds_read_b32 v18, v90 offset:640")
        e("ds_read_b32 v19, v90 offset:896")
        e("v_lshlrev_b32 v80, 16, v84")
        e("v_and_b32 v81, 0xffff0000, v84")
        e("v_lshlrev_b32 v82, 16, v85")
        e("v_and_b32 v83, 0xffff0000, v85")
        e("s_mov_b32 s66, -1")
        e("s_mov_b32 s67, 0x00ffffff")
        e("v_mov_b32 v23, 1.0")
        e("v_cndmask_b32 v22, 0, v23, s[66:67]")
        e("s_waitcnt lgkmcnt(0)")
        e("v_add_f32 v94, v16, v17")
        e("v_add_f32 v84, v18, v19")
        e("s_cmp_gt_u32 s3, 6")
        e("s_cbranch_scc1 L_s3_nogather")
        self.stamp(12)
        self.badt = "v12"
        self.rpoll([(V(32, 4), "v8", 0), (V(36, 4), "v8", self.YS), (V(40, 4), "v10", 0), (V(44, 4), "v10", self.YS)], "v11", temps=V(48, 4))
        self.badt = "v95"
        self.stamp(15, "s7")
        self.stamp(6)
        for j in range(4):
            e(f"v_add_f32 v{32+j}, v{32+j}, v{36+j}")
            e(f"v_add_f32 v{40+j}, v{40+j}, v{44+j}")
        for j in range(4):
            e(f"v_add_f32 v{32+j}, v{32+j}, v{40+j}")
        self.xsum(V(32, 4), V(36, 4))
        e("v_cvt_pk_bf16_f32 v36, v32, v33")
        e("v_cvt_pk_bf16_f32 v37, v34, v35")
        e("v_lshlrev_b32 v32, 16, v36")
        e("v_and_b32 v33, 0xffff0000, v36")
        e("v_lshlrev_b32 v34, 16, v37")
        e("v_and_b32 v35, 0xffff0000, v37")
        for j in range(4):
            e(f"v_add_f32 v{32+j}, v{32+j}, v{80+j}")
        e("v_cvt_pk_bf16_f32 v36, v32, v33")
        e("v_cvt_pk_bf16_f32 v37, v34, v35")
        e("s_mov_b64 exec, 0xffff")
        e("ds_write_b64 v86, v[36:37]")
        e("s_mov_b64 exec, -1")
        e("v_lshlrev_b32 v32, 16, v36")
        e("v_and_b32 v33, 0xffff0000, v36")
        e("v_lshlrev_b32 v34, 16, v37")
        e("v_and_b32 v35, 0xffff0000, v37")
        e("v_add_f32 v40, v32, v33")
        e("v_mul_f32 v41, v32, v32")
        e("v_add_f32 v42, v34, v35")
        e("v_fma_f32 v41, v33, v33, v41")
        e("v_add_f32 v40, v40, v42")
        e("v_fma_f32 v41, v34, v34, v41")
        e("v_fma_f32 v41, v35, v35, v41")
        e("s_nop 0")
        for st in ("quad_perm:[1,0,3,2]", "quad_perm:[2,3,0,1]", "row_half_mirror", "row_mirror"):
            e(f"v_add_f32_dpp v40, v40, v40 {st} row_mask:0xf bank_mask:0xf")
            e(f"v_add_f32_dpp v41, v41, v41 {st} row_mask:0xf bank_mask:0xf")
            e("s_nop 0")
        e("s_mov_b64 exec, 1")
        e("ds_write_b64 v63, v[40:41]")
        e("s_mov_b64 exec, -1")
        e("L_s3_nogather:")
        e("s_waitcnt lgkmcnt(0)")
        e("s_barrier")
        regs = [64, 68, 72, 76, 48, 52, 56]
        for s in range(7):
            e(f"ds_read_b128 v[{regs[s]}:{regs[s]+3}], v89 offset:{64*s}")
        e(f"v_mov_b32 v8, {LDS_ST}")
        for k in range(4):
            e(f"ds_read_b128 v[{24+4*k}:{27+4*k}], v8 offset:{16*k}")
        for s in range(7):
            e(f"s_waitcnt lgkmcnt({10-s})")
            c = "0" if s == 0 else "v[16:19]"
            e(f"v_mfma_f32_16x16x32_bf16 v[16:19], v[{regs[s]}:{regs[s]+3}], a[{4*s}:{4*s+3}], {c}")
        e("s_waitcnt lgkmcnt(0)")
        for k in range(2):
            e(f"v_add_f32 v{24+k}, v{24+k}, v{26+k}")
            e(f"v_add_f32 v{28+k}, v{28+k}, v{30+k}")
            e(f"v_add_f32 v{32+k}, v{32+k}, v{34+k}")
            e(f"v_add_f32 v{36+k}, v{36+k}, v{38+k}")
        for k in range(2):
            e(f"v_add_f32 v{24+k}, v{24+k}, v{28+k}")
            e(f"v_add_f32 v{32+k}, v{32+k}, v{36+k}")
        e("s_mov_b64 exec, 0xffff")
        e("ds_write_b32 v88, v16")
        e("s_mov_b64 exec, -1")
        for k in range(2):
            e(f"v_add_f32 v{24+k}, v{24+k}, v{32+k}")
        self.div448("v44", "v24", "v43", "v45")
        self.div448("v42", "v25", "v43", "v45")
        e("v_fma_f32 v42, -v44, v44, v42")
        e("v_max_f32 v42, 0, v42")
        self.rne("v40", "v44")
        self.rne("v42", "v42")
        e(f"v_add_f32 v42, 0x{F_EPS:08x}, v42")
        self.rne("v42", "v42")
        e("v_sqrt_f32 v41, v42")
        e("s_nop 0")
        self.rne("v41", "v41")
        e("v_rcp_f32 v42, v41")
        e("s_waitcnt lgkmcnt(0)")
        e("s_barrier")
        e("s_cmp_gt_u32 s3, 6")
        e("s_cbranch_scc1 L_s3_w7b")
        e("ds_read_b32 v16, v90")
        e("ds_read_b32 v17, v90 offset:256")
        e("ds_read_b32 v18, v90 offset:128")
        e("ds_read_b32 v19, v90 offset:384")
        e("s_waitcnt lgkmcnt(2)")
        e("v_add_f32 v16, v16, v17")
        e("v_fma_f32 v16, -v40, v94, v16")
        e("s_waitcnt lgkmcnt(0)")
        e("v_add_f32 v18, v18, v19")
        e("v_fma_f32 v18, -v40, v84, v18")
        e("v_mul_f32 v17, v16, v42")
        e("v_mul_f32 v19, v18, v42")
        e("v_fma_f32 v16, -v17, v41, v16")
        e("v_fma_f32 v18, -v19, v41, v18")
        e("v_fma_f32 v16, v16, v42, v17")
        e("v_fma_f32 v18, v18, v42, v19")
        e("v_cvt_pk_bf16_f32 v17, v16, v18")
        e("v_lshlrev_b32 v16, 16, v17")
        e("v_and_b32 v18, 0xffff0000, v17")
        e("v_mul_f32 v17, v16, v16")
        e("v_mov_b32 v19, 0x3d372713")
        e("v_mul_f32 v17, v17, v16")
        e("v_fma_f32 v17, v17, v19, v16")
        e("v_mul_f32 v17, 0xc0135761, v17")
        e("v_min_f32 v17, 0x42fc0000, v17")
        e("v_exp_f32 v17, v17")
        e("s_nop 0")
        e("v_add_f32 v17, 1.0, v17")
        e("v_rcp_f32 v19, v17")
        e("s_nop 0")
        e("v_mul_f32 v20, v16, v19")
        e("v_fma_f32 v21, -v20, v17, v16")
        e("v_fma_f32 v20, v21, v19, v20")
        self.rne("v20", "v20")
        e("v_mul_f32 v20, v20, v18")
        e("v_cvt_pk_bf16_f32 v20, v20, v20")
        e("ds_write_b16 v91, v20")
        e("s_mov_b32 s40, 0xffff0000")
        e("s_mov_b32 s41, 0")
        e("s_mov_b32 s42, 0")
        e("s_mov_b32 s43, 0x0000ffff")
        e("s_mov_b32 s44, 0")
        e("s_mov_b32 s45, 0xffff0000")
        e("s_waitcnt lgkmcnt(0)")
        e("ds_read_b128 v[16:19], v92")
        e("s_waitcnt lgkmcnt(0)")
        for t in range(4):
            e(f"v_mfma_f32_16x16x32_bf16 v[{32+4*t}:{35+4*t}], v[16:19], a[{32+4*t}:{35+4*t}], 0")
        e("s_nop 5")
        e("v_cndmask_b32 v32, v32, v36, s[40:41]")
        e("v_cndmask_b32 v32, v32, v40, s[42:43]")
        e("s_nop 0")
        e("v_cndmask_b32 v32, v32, v44, s[44:45]")
        e("s_nop 1")
        self.pack_dw("v24", "v32", "v25", "v60", "v61", "s[46:47]")
        e("buffer_store_dword v24, v93, s[16:19], 0 offen sc1")
        if self.s4sync:
            e("s_waitcnt vmcnt(0)")
            e("s_barrier")
        self.stamp(7)
        e("s_branch L_end")
        e("L_s3_w7b:")
        e("s_and_b32 s30, s69, 3")
        e("s_cmp_lg_u32 s30, 0")
        e("s_cbranch_scc1 L_end")
        e("v_and_b32 v12, 7, v0")
        e("s_lshl_b32 s30, s69, 4")
        e("v_lshl_add_u32 v5, v12, 3, s30")
        e(f"v_add_u32 v8, {LDS_H}, v5")
        e("ds_read_b64 v[24:25], v8")
        self.srd(24, 50, 896)
        loads = []
        for i in range(7):
            e(f"v_add_u32 v{16+i}, {i*8*self.ZS}, v62")
            loads.append((V(64 + 4 * i, 4), f"v{16+i}", 0))
        e("s_waitcnt lgkmcnt(0)")
        e("v_lshlrev_b32 v32, 16, v24")
        e("v_and_b32 v33, 0xffff0000, v24")
        e("v_lshlrev_b32 v34, 16, v25")
        e("v_and_b32 v35, 0xffff0000, v25")
        if self.s4sync:
            e("s_barrier")
        self.stamp(10)
        self.rpoll(loads, "v11", temps=V(24, 7))
        self.stamp(11, "s7")
        self.stamp(8)
        for j in range(4):
            e(f"v_add_f32 v{64+j}, v{64+j}, v{68+j}")
            e(f"v_add_f32 v{72+j}, v{72+j}, v{76+j}")
            e(f"v_add_f32 v{80+j}, v{80+j}, v{84+j}")
        for j in range(4):
            e(f"v_add_f32 v{64+j}, v{64+j}, v{72+j}")
            e(f"v_add_f32 v{80+j}, v{80+j}, v{88+j}")
        for j in range(4):
            e(f"v_add_f32 v{64+j}, v{64+j}, v{80+j}")
        e("s_nop 0")
        for j in (1, 2, 3, 0):
            pass
        for j in range(4):
            e(f"v_add_f32_dpp v{64+j}, v{64+j}, v{64+j} row_ror:8 row_mask:0xf bank_mask:0xf")
        self.xsum(V(64, 4), V(68, 4))
        e("v_cvt_pk_bf16_f32 v68, v64, v65")
        e("v_cvt_pk_bf16_f32 v69, v66, v67")
        e("v_lshlrev_b32 v64, 16, v68")
        e("v_and_b32 v65, 0xffff0000, v68")
        e("v_lshlrev_b32 v66, 16, v69")
        e("v_and_b32 v67, 0xffff0000, v69")
        for j in range(4):
            e(f"v_add_f32 v{64+j}, v{64+j}, v{32+j}")
        e("v_cvt_pk_bf16_f32 v68, v64, v65")
        e("v_cvt_pk_bf16_f32 v69, v66, v67")
        e("s_mov_b64 exec, 0xff")
        e("buffer_store_dwordx2 v[68:69], v5, s[24:27], 0 offen")
        e("s_cmp_lg_u32 s69, 0")
        e("s_cbranch_scc1 L_s4_done")
        e("v_mov_b32 v8, s6")
        e("v_mov_b32 v9, 0")
        e("s_mov_b64 exec, 1")
        e("buffer_store_dword v8, v9, s[16:19], 0 offen sc1")
        e("L_s4_done:")
        e("s_mov_b64 exec, -1")
        self.stamp(9)

    def text(self):
        self.build()
        src = HDR + f"; @launch grid=(256,1,1) block=(512,1,1) lds={LDS_TOTAL + self.lds_pad}\n"
        src += '.amdgcn_target "amdgcn-amd-amdhsa--gfx950"\n.text\n'
        src += f".globl {KERN}\n.p2align 8\n.type {KERN},@function\n{KERN}:\n"
        src += "\n".join(self.o) + "\n"
        nacc = self.NS * 4
        src += f""".section .rodata,"a"
.p2align 6
.amdhsa_kernel {KERN}
  .amdhsa_next_free_vgpr {96 + nacc}
  .amdhsa_next_free_sgpr 102
  .amdhsa_accum_offset 96
  .amdhsa_group_segment_fixed_size 0
  .amdhsa_kernarg_size 96
  .amdhsa_user_sgpr_count 2
  .amdhsa_user_sgpr_kernarg_segment_ptr 1
  .amdhsa_system_sgpr_workgroup_id_x 1
.end_amdhsa_kernel
"""
        return src


if __name__ == "__main__":
    import argparse
    ap = argparse.ArgumentParser()
    ap.add_argument("-o", default="k3.s")
    ap.add_argument("--NS", type=int, default=40)
    ap.add_argument("--W0", type=int, default=8)
    ap.add_argument("--W", type=int, default=6)
    ap.add_argument("--stamps", action="store_true")
    ap.add_argument("--light", action="store_true")
    ap.add_argument("--sleep", type=int, default=0)
    ap.add_argument("--s3_even", action="store_true")
    ap.add_argument("--dma_early", action="store_true")
    ap.add_argument("--R", type=int, default=0)
    ap.add_argument("--qsleep", type=int, default=0)
    ap.add_argument("--nowarm", action="store_true")
    ap.add_argument("--w0late", action="store_true")
    ap.add_argument("--MP", type=int, default=0)
    ap.add_argument("--MPn", default="7")
    ap.add_argument("--s4sync", action="store_true")
    ap.add_argument("--nofast", action="store_true")
    ap.add_argument("--ZS", type=int, default=2048)
    ap.add_argument("--YS", type=int, default=2048)
    ap.add_argument("--split2", action="store_true")
    ap.add_argument("--s2grp", action="store_true")
    ap.add_argument("--local1", action="store_true")
    ap.add_argument("--dma_mid", action="store_true")
    ap.add_argument("--thr", type=int, default=16)
    ap.add_argument("--slow", type=int, default=6)
    ap.add_argument("--trace", type=int, default=2)
    a = ap.parse_args()
    TR = a.trace
    g = Gen(NS=a.NS, W0=a.W0, W=a.W, stamps=a.stamps, sleep=a.sleep, s3_odd=not a.s3_even, dma_late=not a.dma_early, R=a.R, qsleep=a.qsleep, warm=not a.nowarm, w0early=not a.w0late, MP=a.MP, thr=a.thr, slow=a.slow)
    g.trace_n = TR if not a.light else -1
    g.light = a.light
    g.fast = not a.nofast
    g.ZS = a.ZS
    g.YS = a.YS
    g.split2 = a.split2
    g.s2grp = a.s2grp
    g.local1 = a.local1
    g.dma_mid = a.dma_mid
    g.s4sync = a.s4sync
    g.MPn = tuple(int(x) for x in a.MPn.split(","))
    open(a.o, "w").write(g.text())
```

```python
NAME = "sequential_preLN__gqa_block_cached__geglu_ffn__decode"
KERN = NAME + "_kernel"
HDR = open("cdna_kernels/%s.s.ref" % NAME).read().split("; Override launch")[0]

WS_QX = 0x1000
WS_PO = 0x20000
PO_BLK = 1152
WS_Y = 0x100000
WS_Z = 0x120000
ROW = 2048
WS_STAMP = 64 << 20
WS_SIZE = 512 << 20

LDS_W = 0
LDS_O = 86016
LDS_ML = LDS_O + 16384
LDS_Q = LDS_ML + 128
LDS_H = LDS_Q + 1024
LDS_XN = LDS_H + 1024
LDS_GU = LDS_XN + 1024
LDS_CS = LDS_GU + 512
LDS_ST = LDS_CS + 512
LDS_TOTAL = LDS_ST + 64

CEXP = 0x3DB8AA3B
F_INV448 = 0x3B124925
F_448 = 0x43E00000
F_EPS = 0x3727C5AC
POLL_MAX = 0x40000


def V(a, n):
    return [f"v{a+i}" for i in range(n)]


class Gen:
    def __init__(self, NS=40, W0=8, W=6, stamps=False, light=False):
        self.o = []
        self.NS, self.W0, self.W = NS, W0, W
        self.stamps = stamps
        self.light = light
        self.lab = 0

    def e(self, s):
        for line in s.strip("\n").split("\n"):
            line = line.strip()
            if not line:
                continue
            self.o.append(line if line.endswith(":") or line.startswith(";") else "    " + line)

    def c(self, text):
        self.o.append("    ; " + text)

    def label(self, p="L"):
        self.lab += 1
        return f"{p}_{self.lab}"

    def stamp(self, k, src=None):
        if not self.stamps or (self.light and k not in (4, 9, 14)):
            return
        if src is None:
            self.e("s_memrealtime s[98:99]")
            self.e("s_waitcnt lgkmcnt(0)")
            self.e(f"s_mov_b32 s{80+k}, s98")
        else:
            self.e(f"s_mov_b32 s{80+k}, {src}")

    def stamp_flush(self):
        if not self.stamps:
            return
        e = self.e
        e("s_mov_b64 exec, -1")
        for k in range(16):
            e(f"v_mov_b32 v{32+k}, s{80+k}")
        e("s_lshl_b32 s30, s2, 3")
        e("s_add_u32 s30, s30, s3")
        e("s_lshl_b32 s30, s30, 6")
        e(f"s_add_u32 s30, s30, {WS_STAMP}")
        e("v_mov_b32 v3, s30")
        e("s_mov_b64 exec, 1")
        for k in range(4):
            e(f"buffer_store_dwordx4 v[{32+4*k}:{35+4*k}], v3, s[16:19], 0 offen offset:{16*k}")

    def rne(self, dst, src):
        self.e(f"v_cvt_pk_bf16_f32 {dst}, {src}, {src}")
        self.e(f"v_lshlrev_b32 {dst}, 16, {dst}")

    def wave_sum1(self, r):
        self.e("s_nop 1")
        for st in ("row_shr:1 row_mask:0xf bank_mask:0xf bound_ctrl:0", "row_shr:2 row_mask:0xf bank_mask:0xf bound_ctrl:0",
                   "row_shr:4 row_mask:0xf bank_mask:0xf bound_ctrl:0", "row_shr:8 row_mask:0xf bank_mask:0xf bound_ctrl:0",
                   "row_bcast:15 row_mask:0xa bank_mask:0xf", "row_bcast:31 row_mask:0xc bank_mask:0xf"):
            self.e(f"v_add_f32_dpp {r}, {r}, {r} {st}")
            self.e("s_nop 1")

    def pack4(self, w, v):
        self.e(f"v_perm_b32 {w[0]}, {v[0]}, {v[3]}, s58")
        self.e(f"v_perm_b32 {w[1]}, {v[1]}, {v[3]}, s59")
        self.e(f"v_perm_b32 {w[2]}, {v[2]}, {v[3]}, s60")
        self.e(f"v_add3_u32 {w[3]}, {w[0]}, {w[1]}, {w[2]}")
        self.e(f"v_sub_u32 {w[3]}, s6, {w[3]}")

    def pack_dw(self, out, v, tmp, selv, vtag, m3):
        e = self.e
        e(f"v_mov_b32_dpp {tmp}, {v} quad_perm:[3,3,3,3] row_mask:0xf bank_mask:0xf")
        e(f"v_perm_b32 {out}, {v}, {tmp}, {selv}")
        e("s_nop 1")
        e(f"v_add_u32_dpp {tmp}, {out}, {out} quad_perm:[1,0,3,2] row_mask:0xf bank_mask:0xf")
        e("s_nop 1")
        e(f"v_add_u32_dpp {tmp}, {tmp}, {tmp} quad_perm:[2,3,0,1] row_mask:0xf bank_mask:0xf")
        e(f"v_sub_u32 {tmp}, {vtag}, {tmp}")
        e(f"v_cndmask_b32 {out}, {out}, {tmp}, {m3}")

    def pack_dw_consts(self, selv, vtag, m3lo):
        e = self.e
        e(f"s_mov_b32 s{m3lo}, 0x88888888")
        e(f"s_mov_b32 s{m3lo+1}, 0x88888888")
        e(f"v_and_b32 {selv}, 3, v0")
        e(f"v_add_u32 {selv}, 0x07060501, {selv}")
        e(f"v_mov_b32 {vtag}, 0x0c0c0c0c")
        e(f"v_cndmask_b32 {selv}, {selv}, {vtag}, s[{m3lo}:{m3lo+1}]")
        e(f"v_mov_b32 {vtag}, s6")

    def unpack4(self, w):
        self.e(f"v_perm_b32 {w[3]}, {w[1]}, {w[0]}, s61")
        self.e(f"v_perm_b32 {w[3]}, {w[2]}, {w[3]}, s62")

    def poll(self, loads, sbase, temps, acc, unpack=True):
        e = self.e
        n = len(loads)
        lp = self.label("Lpoll")
        dn = self.label("Lpolled")
        sm = [f"s[{sbase+2*k}:{sbase+2*k+1}]" for k in range(n)]
        e("s_mov_b32 s7, 0")
        for regs, va, off in loads:
            r0 = int(regs[0][1:])
            e(f"buffer_load_dwordx4 v[{r0}:{r0+3}], {va}, s[16:19], 0 offen offset:{off} sc1")
        e(f"s_branch {lp}w")
        e(f"{lp}:")
        for k, (regs, va, off) in enumerate(loads):
            sk = self.label("Lsk")
            r0 = int(regs[0][1:])
            e(f"s_cmp_eq_u64 {sm[k]}, 0")
            e(f"s_cbranch_scc1 {sk}")
            e(f"s_mov_b64 exec, {sm[k]}")
            e(f"buffer_load_dwordx4 v[{r0}:{r0+3}], {va}, s[16:19], 0 offen offset:{off} sc1")
            e(f"{sk}:")
        e("s_mov_b64 exec, -1")
        e(f"{lp}w:")
        e("s_waitcnt vmcnt(0)")
        for k, (w, va, off) in enumerate(loads):
            e(f"v_add3_u32 {temps[k]}, {w[0]}, {w[1]}, {w[2]}")
        for k, (w, va, off) in enumerate(loads):
            e(f"v_add3_u32 {temps[k]}, {temps[k]}, {w[3]}, s57")
        rest = list(temps[:n])
        e(f"v_or3_b32 {acc}, {rest[0]}, {rest[1]}, {rest[2]}")
        rest = rest[3:]
        while rest:
            if len(rest) >= 2:
                e(f"v_or3_b32 {acc}, {acc}, {rest[0]}, {rest[1]}")
                rest = rest[2:]
            else:
                e(f"v_or_b32 {acc}, {acc}, {rest[0]}")
                rest = rest[1:]
        e(f"v_cmp_ne_u32 vcc, 0, {acc}")
        e("s_add_u32 s7, s7, 1")
        e(f"s_cbranch_vccz {dn}")
        for k in range(n):
            e(f"v_cmp_ne_u32 {sm[k]}, 0, {temps[k]}")
        e(f"s_cmp_gt_u32 s7, 0x{POLL_MAX:x}")
        e(f"s_cbranch_scc0 {lp}")
        e(f"{dn}:")
        if unpack:
            for regs, va, off in loads:
                self.unpack4(regs)

    def div448(self, dst, src, a, b):
        e = self.e
        e(f"v_mov_b32 {a}, {src}")
        e(f"v_mul_f32 {dst}, 0x{F_INV448:08x}, {a}")
        e(f"v_mov_b32 {b}, 0x{F_448:08x}")
        e(f"v_fma_f32 {a}, -{dst}, {b}, {a}")
        e(f"v_mov_b32 {b}, 0x{F_INV448:08x}")
        e(f"v_fma_f32 {dst}, {a}, {b}, {dst}")

    def ln_stats(self, f, vm, t):
        e = self.e
        e(f"v_add_f32 {t[0]}, {f[0]}, {f[1]}")
        e(f"v_add_f32 {t[1]}, {f[2]}, {f[3]}")
        e(f"v_add_f32 {t[2]}, {f[4]}, {f[5]}")
        e(f"v_add_f32 {t[3]}, {f[6]}, {f[7]}")
        e(f"v_add_f32 {t[0]}, {t[0]}, {t[1]}")
        e(f"v_add_f32 {t[2]}, {t[2]}, {t[3]}")
        e(f"v_add_f32 {t[0]}, {t[0]}, {t[2]}")
        self.wave_sum1(t[0])
        e(f"v_readlane_b32 s30, {t[0]}, 63")
        e("s_nop 1")
        self.div448(t[4], "s30", t[3], t[5])
        e(f"v_sub_f32 {t[0]}, {f[0]}, {t[4]}")
        e(f"v_mul_f32 {t[1]}, {t[0]}, {t[0]}")
        for i in range(1, 8):
            e(f"v_sub_f32 {t[0]}, {f[i]}, {t[4]}")
            e(f"v_fma_f32 {t[1]}, {t[0]}, {t[0]}, {t[1]}")
        e(f"v_mul_f32 {t[1]}, {t[1]}, {vm}")
        self.wave_sum1(t[1])
        e(f"v_readlane_b32 s30, {t[1]}, 63")
        e("s_nop 1")
        self.div448(t[2], "s30", t[3], t[5])
        self.rne(t[0], t[4])
        self.rne(t[2], t[2])
        e(f"v_add_f32 {t[2]}, 0x{F_EPS:08x}, {t[2]}")
        self.rne(t[2], t[2])
        e(f"v_sqrt_f32 {t[1]}, {t[2]}")
        e("s_nop 0")
        self.rne(t[1], t[1])
        e(f"v_rcp_f32 {t[2]}, {t[1]}")
        e("s_nop 0")

    def ln_apply(self, dst, x, t, a, b):
        e = self.e
        e(f"v_sub_f32 {a}, {x}, {t[0]}")
        self.rne(a, a)
        e(f"v_mul_f32 {b}, {a}, {t[2]}")
        e(f"v_fma_f32 {a}, -{b}, {t[1]}, {a}")
        e(f"v_fma_f32 {b}, {a}, {t[2]}, {b}")
        self.rne(dst, b)

    def unpack8(self, f, src):
        for i in range(4):
            self.e(f"v_lshlrev_b32 {f[2*i]}, 16, {src[i]}")
            self.e(f"v_and_b32 {f[2*i+1]}, 0xffff0000, {src[i]}")

    def xsum(self, regs, tmps, op="v_add_f32"):
        e = self.e
        for sw in ("v_permlane16_swap_b32", "v_permlane32_swap_b32"):
            for r, t in zip(regs, tmps):
                e(f"v_mov_b32 {t}, {r}")
            if len(regs) < 3:
                e("s_nop 1")
            for r, t in zip(regs, tmps):
                e(f"{sw} {r}, {t}")
            if len(regs) < 3:
                e("s_nop 1")
            for r, t in zip(regs, tmps):
                e(f"{op} {r}, {r}, {t}")

    def rowscatter4(self, r):
        e = self.e
        e("s_nop 1")
        e(f"v_permlane16_swap_b32 {r[0]}, {r[1]}")
        e(f"v_permlane16_swap_b32 {r[2]}, {r[3]}")
        e("s_nop 0")
        e(f"v_add_f32 {r[0]}, {r[0]}, {r[1]}")
        e(f"v_add_f32 {r[2]}, {r[2]}, {r[3]}")
        e("s_nop 1")
        e(f"v_permlane32_swap_b32 {r[0]}, {r[2]}")
        e("s_nop 0")
        e(f"v_add_f32 {r[0]}, {r[0]}, {r[2]}")

    def tag(self):
        self.e("s_mul_i32 s6, s6, 0x9E3779B1")
        self.e("s_add_u32 s6, s6, 0x7F4A7C15")
        self.e("s_or_b32 s6, s6, 1")
        self.e("s_sub_u32 s57, 0, s6")

    def srd(self, base, p, size):
        e = self.e
        e(f"s_mov_b32 s{base}, s{p}")
        e(f"s_mov_b32 s{base+1}, s{p+1}")
        e(f"s_mov_b32 s{base+2}, 0x{size:x}")
        e(f"s_mov_b32 s{base+3}, 0x20000")

    def consts(self):
        e = self.e
        e("s_mov_b32 s58, 0x07060501")
        e("s_mov_b32 s59, 0x07060502")
        e("s_mov_b32 s60, 0x07060503")
        e("s_mov_b32 s61, 0x0c04000c")
        e("s_mov_b32 s62, 0x04020100")
        e(f"s_mov_b32 s63, 0x{CEXP:08x}")

    def stream_load(self, i):
        n, half = (i % 64) >> 1, i & 1
        off = n * 2048 + half * 256
        hi, lo = off & ~4095, off & 4095
        if self.cur_so != hi:
            self.e(f"s_add_u32 s29, s28, {hi}")
            self.cur_so = hi
        slot = (i % self.NS) * 4
        srd, vo = ("s[8:11]", "v1") if i < 64 else ("s[12:15]", "v2")
        self.e(f"buffer_load_dwordx4 a[{slot}:{slot+3}], {vo}, {srd}, s29 offen offset:{lo} nt")

    def slot(self, i):
        s = (i % self.NS) * 4
        return f"a[{s}:{s+3}]"

    def build(self):
        e, c = self.e, self.c
        NS, W0, W = self.NS, self.W0, self.W
        self.cur_so = None
        if self.stamps:
            e("s_memrealtime s[96:97]")
            for k in range(16):
                e(f"s_mov_b32 s{80+k}, 0")
        c("workgroup = (kv head g = id&7, key chunk = id>>3); 8 waves, 128 keys each; extra workgroups leave at once")
        e("s_cmp_ge_u32 s2, 256")
        e("s_cbranch_scc1 L_exit")
        e("s_load_dwordx16 s[32:47], s[0:1], 0")
        e("s_load_dwordx8 s[48:55], s[0:1], 64")
        e("v_lshrrev_b32 v3, 6, v0")
        e("v_and_b32 v0, 63, v0")
        e("s_and_b32 s4, s2, 7")
        e("v_readfirstlane_b32 s3, v3")
        e("s_lshr_b32 s5, s2, 3")
        c("K lane offset v1 = ((l>>2)&3)*512 + (l>>4)*64 + (l&3)*16 ; V lane offset v2 = (l>>4)*512 + (l&15)*16")
        e("v_bfe_u32 v1, v0, 2, 2")
        e("v_lshlrev_b32 v1, 9, v1")
        e("v_lshrrev_b32 v4, 4, v0")
        e("v_lshl_add_u32 v1, v4, 6, v1")
        e("v_and_b32 v5, 3, v0")
        e("v_lshl_add_u32 v1, v5, 4, v1")
        e("v_and_b32 v5, 15, v0")
        e("v_lshlrev_b32 v2, 4, v5")
        e("v_lshl_add_u32 v2, v4, 9, v2")
        e("s_lshl_b32 s28, s4, 24")
        e("s_lshl_b32 s30, s5, 19")
        e("s_add_u32 s28, s28, s30")
        e("s_lshl_b32 s30, s3, 16")
        e("s_add_u32 s28, s28, s30")
        e("s_cmp_lg_u32 s3, 0")
        e("s_waitcnt lgkmcnt(0)")
        self.srd(8, 34, 0x8000000)
        e("s_cbranch_scc1 L_pref")
        c("---- wave 0: partial q for 64 columns x 112 rows of wq, publish, gather the whole q of this head pair ----")
        self.srd(20, 32, 896)
        self.srd(24, 38, 3670016)
        e("v_lshlrev_b32 v6, 4, v0")
        e("v_lshrrev_b32 v7, 3, v0")
        e("v_lshlrev_b32 v3, 13, v7")
        e("v_and_b32 v5, 7, v0")
        e("v_lshl_add_u32 v3, v5, 4, v3")
        e("s_and_b32 s72, s5, 3")
        e("s_lshr_b32 s73, s5, 2")
        e(f"s_mul_i32 s74, s72, {112*8192}")
        e("s_lshl_b32 s30, s4, 10")
        e("s_add_u32 s74, s74, s30")
        e("s_lshl_b32 s30, s73, 7")
        e("s_add_u32 s74, s74, s30")
        e("buffer_load_dwordx4 v[16:19], v6, s[20:23], 0 offen")
        for i in range(14):
            e(f"s_add_u32 s30, s74, {i*65536}")
            e(f"buffer_load_dwordx4 v[{32+4*i}:{35+4*i}], v3, s[24:27], s30 offen")
        e("s_load_dword s6, s[54:55], 0")
        for i in range(W0):
            self.stream_load(i)
        self.consts()
        self.stamp(14, "s96")
        e("v_cmp_gt_u32 vcc, 56, v0")
        e("v_mov_b32 v22, 0")
        e("v_mov_b32 v23, 1.0")
        e("v_cndmask_b32 v22, v22, v23, vcc")
        e(f"s_waitcnt vmcnt({14 + W0})")
        f = V(8, 8)
        self.unpack8(f, V(16, 4))
        self.ln_stats(f, "v22", V(88, 6))
        for j in range(8):
            self.ln_apply(f[j], f[j], V(88, 6), "v94", "v95")
        e("s_mov_b32 s30, 0x07060302")
        for j in range(4):
            e(f"v_perm_b32 v{4+j}, v{9+2*j}, v{8+2*j}, s30")
        e("v_lshlrev_b32 v24, 4, v0")
        e(f"v_add_u32 v24, {LDS_XN}, v24")
        e("ds_write_b128 v24, v[4:7]")
        e("s_mul_i32 s30, s72, 224")
        e(f"s_add_u32 s30, s30, {LDS_XN}")
        e("v_lshrrev_b32 v3, 3, v0")
        e("v_lshlrev_b32 v3, 1, v3")
        e("v_add_u32 v3, s30, v3")
        e("s_waitcnt lgkmcnt(0)")
        for i in range(14):
            e(f"ds_read_u16 v{16+i}, v3 offset:{16*i}")
        self.tag()
        for i in range(14):
            e(f"s_waitcnt vmcnt({13 - i + W0}) lgkmcnt({13 - i})")
            e(f"v_lshlrev_b32 v{30+(i&1)}, 16, v{16+i}")
            for d in range(4):
                w = 32 + 4 * i + d
                e(f"v_dot2_f32_bf16 v{8+2*d}, v{w}, v{16+i}, {'0' if i == 0 else 'v%d' % (8+2*d)}")
                e(f"v_dot2_f32_bf16 v{9+2*d}, v{w}, v{30+(i&1)}, {'0' if i == 0 else 'v%d' % (9+2*d)}")
        e("s_nop 2")
        for j in range(8):
            e(f"v_add_f32_dpp v{8+j}, v{8+j}, v{8+j} row_ror:8 row_mask:0xf bank_mask:0xf")
        self.xsum(V(8, 8), V(16, 8))
        for j in range(8):
            e(f"v_add_u32 v{8+j}, 0x80, v{8+j}")
        e("s_mov_b32 s64, 0xff00ff00")
        e("s_mov_b32 s65, 0xff00ff00")
        for j in range(4):
            e(f"v_cndmask_b32 v{8+j}, v{8+j}, v{12+j}, s[64:65]")
        self.pack4(V(32, 4), V(8, 4))
        e("s_lshl_b32 s30, s4, 13")
        e(f"s_add_u32 s75, s30, {WS_QX}")
        e("s_lshl_b32 s30, s72, 11")
        e("s_lshl_b32 s31, s73, 8")
        e("s_add_u32 s30, s30, s31")
        e("s_add_u32 s30, s30, s75")
        e("v_lshlrev_b32 v4, 4, v0")
        e("v_add_u32 v4, s30, v4")
        self.srd(16, 54, WS_SIZE)
        e("s_mov_b64 exec, 0xffff")
        e("buffer_store_dwordx4 v[32:35], v4, s[16:19], 0 offen sc1")
        e("s_mov_b64 exec, -1")
        self.stamp(1)
        self.srd(12, 36, 0x8000000)
        for i in range(W0, NS):
            self.stream_load(i)
        e("v_lshlrev_b32 v3, 4, v0")
        e("v_add_u32 v4, s75, v3")
        e("v_add_u32 v5, 4096, v4")
        loads = []
        for b in range(4):
            for i in range(2):
                loads.append((V(40 + 8 * b + 4 * i, 4), "v4" if b < 2 else "v5", (b & 1) * 2048 + i * 1024))
        self.poll(loads, 64, V(72, 8), "v95")
        self.stamp(13)
        for b in range(4):
            for i in range(2):
                for j in range(3):
                    e(f"v_and_b32 v{40+8*b+4*i+j}, 0xffffff00, v{40+8*b+4*i+j}")
        for k in range(8):
            e(f"v_add_f32 v{40+k}, v{40+k}, v{48+k}")
            e(f"v_add_f32 v{56+k}, v{56+k}, v{64+k}")
        for k in range(8):
            e(f"v_add_f32 v{40+k}, v{40+k}, v{56+k}")
        for k in range(4):
            e(f"v_cvt_pk_bf16_f32 v{48+k}, v{40+2*k}, v{41+2*k}")
        e("v_lshrrev_b32 v3, 4, v0")
        e("v_lshlrev_b32 v3, 7, v3")
        e("v_and_b32 v4, 7, v0")
        e("v_lshl_add_u32 v3, v4, 4, v3")
        e("v_bfe_u32 v4, v0, 3, 1")
        e("v_lshl_add_u32 v3, v4, 3, v3")
        e(f"v_add_u32 v3, {LDS_Q}, v3")
        e("ds_write_b64 v3, v[48:49]")
        e("ds_write_b64 v3, v[50:51] offset:512")
        e("s_branch L_qready")
        c("---- waves 1..7: paced prefetch of the first K tiles ----")
        e("L_pref:")
        self.cur_so = None
        for i in range(W0):
            self.stream_load(i)
        e("s_load_dword s6, s[54:55], 0")
        self.srd(12, 36, 0x8000000)
        self.srd(16, 54, WS_SIZE)
        self.consts()
        self.stamp(14, "s96")
        for i in range(W0, NS):
            e(f"s_waitcnt vmcnt({W - 1})")
            self.stream_load(i)
        e("s_waitcnt lgkmcnt(0)")
        self.tag()
        e("L_qready:")
        c("PV masks v64..v67: lane j0 = l&7 keeps bf16 slot j0 of the A operand")
        e("v_and_b32 v5, 1, v0")
        e("v_mov_b32 v6, 0xffff")
        e("v_lshlrev_b32 v5, 4, v5")
        e("v_lshlrev_b32 v6, v5, v6")
        e("v_bfe_u32 v7, v0, 1, 2")
        for jj in range(4):
            e(f"v_cmp_eq_u32 vcc, {jj}, v7")
            e("s_nop 1")
            e(f"v_cndmask_b32 v{64+jj}, 0, v6, vcc")
        e("v_mov_b32 v84, 0xff800000")
        e("v_bfe_u32 v3, v0, 3, 1")
        e("v_lshlrev_b32 v3, 9, v3")
        e("v_lshrrev_b32 v4, 4, v0")
        e("v_lshl_add_u32 v3, v4, 6, v3")
        e("v_and_b32 v5, 3, v0")
        e("v_lshl_add_u32 v3, v5, 4, v3")
        e(f"v_add_u32 v3, {LDS_Q}, v3")
        e("s_waitcnt lgkmcnt(0)")
        e("s_barrier")
        self.stamp(2)
        e("ds_read_b128 v[8:11], v3")
        e("ds_read_b128 v[12:15], v3 offset:256")
        c("epilogue addresses: v88 = per-wave O write, v89 = (m,l) write, v90 = O read, v91 = (m,l) read, v92 = partial block")
        e("v_lshrrev_b32 v4, 5, v0")
        e("v_lshlrev_b32 v88, 10, v4")
        e("v_and_b32 v5, 15, v0")
        e("v_lshl_add_u32 v88, v5, 5, v88")
        e("v_bfe_u32 v5, v0, 4, 1")
        e("v_lshl_add_u32 v88, v5, 4, v88")
        e("s_lshl_b32 s30, s3, 11")
        e(f"s_add_u32 s30, s30, {LDS_O}")
        e("v_add_u32 v88, s30, v88")
        e("v_bfe_u32 v5, v0, 3, 1")
        e("v_lshlrev_b32 v89, 6, v5")
        e("s_lshl_b32 s30, s3, 3")
        e(f"s_add_u32 s30, s30, {LDS_ML}")
        e("v_add_u32 v89, s30, v89")
        e("v_lshlrev_b32 v3, 4, v0")
        e("s_lshl_b32 s30, s3, 10")
        e(f"s_add_u32 s30, s30, {LDS_O}")
        e("v_add_u32 v90, s30, v3")
        e("s_lshl_b32 s30, s3, 6")
        e(f"s_add_u32 s30, s30, {LDS_ML}")
        e("v_mov_b32 v91, s30")
        e("s_lshl_b32 s30, s4, 1")
        e("s_add_u32 s30, s30, s3")
        e("s_lshl_b32 s30, s30, 5")
        e("s_add_u32 s30, s30, s5")
        e(f"s_mul_i32 s30, s30, {PO_BLK}")
        e(f"s_add_u32 s30, s30, {WS_PO}")
        e("v_add_u32 v92, s30, v3")
        c("roles (s68: 0 none, 1 = output projection, 2 = FFN; s69 = index): ids with g in {4,6} / g in {0,2}")
        lab = self.label("Lrole")
        e("s_mov_b32 s68, 0")
        e("s_mov_b32 s69, 0")
        e("s_and_b32 s30, s4, 1")
        e("s_cmp_lg_u32 s30, 0")
        e(f"s_cbranch_scc1 {lab}")
        e("s_lshr_b32 s30, s4, 1")
        e("s_cmp_ge_u32 s30, 2")
        e(f"s_cbranch_scc1 {lab}a")
        e("s_cmp_ge_u32 s5, 28")
        e(f"s_cbranch_scc1 {lab}")
        e("s_mov_b32 s68, 2")
        e("s_mul_i32 s69, s30, 28")
        e("s_add_u32 s69, s69, s5")
        e(f"s_branch {lab}")
        e(f"{lab}a:")
        e("s_mov_b32 s68, 1")
        e("s_sub_u32 s69, s30, 2")
        e("s_lshl_b32 s69, s69, 5")
        e("s_add_u32 s69, s69, s5")
        e(f"{lab}:")
        e("s_waitcnt lgkmcnt(0)")

        c("================= K phase: scores of 4 keys x 2 heads per pair of MFMAs =================")
        issued = NS

        def post_k(n):
            d = 16 + (n % 4) * 4
            t = 32 + n
            e(f"v_mov_b32_dpp v{t}, v{d} quad_perm:[0,0,0,0] row_mask:0xf bank_mask:0xf")
            e(f"v_add_f32_dpp v{t}, v{d+1}, v{t} quad_perm:[1,1,1,1] row_mask:0xf bank_mask:0xf")
            e(f"v_add_f32_dpp v{t}, v{d+2}, v{t} quad_perm:[2,2,2,2] row_mask:0xf bank_mask:0xf")
            e(f"v_add_f32_dpp v{t}, v{d+3}, v{t} quad_perm:[3,3,3,3] row_mask:0xf bank_mask:0xf")
            e(f"v_max_f32 v84, v84, v{t}")

        for n in range(32):
            i = 2 * n
            e(f"s_waitcnt vmcnt({issued - i - 2})")
            d = 16 + (n % 4) * 4
            e(f"v_mfma_f32_16x16x32_bf16 v[{d}:{d+3}], {self.slot(i)}, v[8:11], 0")
            e(f"v_mfma_f32_16x16x32_bf16 v[{d}:{d+3}], {self.slot(i+1)}, v[12:15], v[{d}:{d+3}]")
            for k in range(2):
                if issued < 128:
                    self.stream_load(issued)
                    issued += 1
            if n >= 2:
                post_k(n - 2)
        e("s_nop 7")
        post_k(30)
        post_k(31)
        self.stamp(3)
        c("softmax over this wave's 128 keys (scores rounded to bf16 first, true max of the wave subtracted)")
        self.xsum(["v84"], ["v85"], op="v_max_f32")
        self.rne("v84", "v84")
        e("v_mov_b32 v86, 0")
        e("v_mov_b32 v87, 0")
        for m in range(16):
            a, b = 32 + 2 * m, 33 + 2 * m
            e(f"v_cvt_pk_bf16_f32 v85, v{a}, v{b}")
            e(f"v_lshlrev_b32 v{a}, 16, v85")
            e(f"v_and_b32 v{b}, 0xffff0000, v85")
            e(f"v_sub_f32 v{a}, v{a}, v84")
            e(f"v_sub_f32 v{b}, v{b}, v84")
            e(f"v_mul_f32 v{a}, s63, v{a}")
            e(f"v_mul_f32 v{b}, s63, v{b}")
            e(f"v_exp_f32 v{a}, v{a}")
            e(f"v_exp_f32 v{b}, v{b}")
            e("s_nop 0")
            e(f"v_add_f32 v86, v86, v{a}")
            e(f"v_add_f32 v87, v87, v{b}")
        e("v_add_f32 v86, v86, v87")
        self.xsum(["v86"], ["v85"])
        e("v_mov_b32 v94, v84")
        e("v_mov_b32 v95, v86")
        e("s_mov_b64 exec, 0x101")
        e("ds_write_b64 v89, v[94:95]")
        e("s_mov_b64 exec, -1")

        c("================= V phase =================")

        def build_a(n):
            a = 68 + (n % 2) * 4
            e(f"v_cvt_pk_bf16_f32 v85, v{32+n}, v{32+n}")
            for jj in range(4):
                e(f"v_and_b32 v{a+jj}, v85, v{64+jj}")

        build_a(0)
        for n in range(32):
            i = 64 + 2 * n
            if n + 1 < 32:
                build_a(n + 1)
            e(f"s_waitcnt vmcnt({issued - i - 2})")
            a = 68 + (n % 2) * 4
            c0 = "0" if n == 0 else "v[76:79]"
            c1 = "0" if n == 0 else "v[80:83]"
            e(f"v_mfma_f32_16x16x32_bf16 v[76:79], v[{a}:{a+3}], {self.slot(i)}, {c0}")
            e(f"v_mfma_f32_16x16x32_bf16 v[80:83], v[{a}:{a+3}], {self.slot(i+1)}, {c1}")
            for k in range(2):
                if issued < 128:
                    self.stream_load(issued)
                    issued += 1
        self.stamp(4)
        e("s_nop 7")
        e("ds_write_b128 v88, v[76:79]")
        e("ds_write_b128 v88, v[80:83] offset:512")
        e("s_waitcnt lgkmcnt(0)")
        e("s_barrier")
        c("---- waves 0,1: merge the 8 waves of head 2g+w and publish the partial ----")
        e("s_cmp_gt_u32 s3, 1")
        e("s_cbranch_scc1 L_pub_done")
        for k in range(4):
            e(f"ds_read_b128 v[{16+4*k}:{19+4*k}], v91 offset:{16*k}")
        for wv in range(8):
            e(f"ds_read_b128 v[{32+4*wv}:{35+4*wv}], v90 offset:{2048*wv}")
        e("v_mov_b32 v10, 0")
        e("s_waitcnt lgkmcnt(8)")
        e("v_max3_f32 v8, v16, v18, v20")
        e("v_max3_f32 v9, v22, v24, v26")
        e("v_max3_f32 v8, v8, v28, v30")
        e("v_max_f32 v8, v8, v9")
        for wv in range(8):
            e(f"v_sub_f32 v{16+2*wv}, v{16+2*wv}, v8")
        for wv in range(8):
            e(f"v_mul_f32 v{16+2*wv}, s63, v{16+2*wv}")
        for wv in range(8):
            e(f"v_exp_f32 v{16+2*wv}, v{16+2*wv}")
        e("s_nop 0")
        e("v_mul_f32 v9, v16, v17")
        for wv in range(1, 8):
            e(f"v_fma_f32 v9, v{16+2*wv}, v{17+2*wv}, v9")
        self.pack4(V(68, 4), ["v9", "v10", "v10", "v8"])
        e("s_waitcnt lgkmcnt(0)")
        for j in (0, 2):
            e(f"v_pk_mul_f32 v[{12+j}:{13+j}], v[16:17], v[{32+j}:{33+j}] op_sel_hi:[0,1]")
        for wv in range(1, 8):
            for j in (0, 2):
                e(f"v_pk_fma_f32 v[{12+j}:{13+j}], v[{16+2*wv}:{17+2*wv}], v[{32+4*wv+j}:{33+4*wv+j}], v[{12+j}:{13+j}] op_sel_hi:[0,1,1]")
        self.pack4(V(64, 4), V(12, 4))
        e("buffer_store_dwordx4 v[64:67], v92, s[16:19], 0 offen sc1")
        e("s_mov_b64 exec, 1")
        e("buffer_store_dwordx4 v[68:71], v92, s[16:19], 0 offen offset:1024 sc1")
        e("s_mov_b64 exec, -1")
        e("L_pub_done:")
        self.stamp(5)
        e("s_cmp_eq_u32 s68, 0")
        e("s_cbranch_scc1 L_end")
        self.role_dma()
        e("s_cmp_eq_u32 s68, 2")
        e("s_cbranch_scc1 L_s3")
        self.s2()
        e("s_branch L_end")
        e("L_s3:")
        self.s3()
        e("L_end:")
        self.stamp_flush()
        e("L_exit:")
        e("s_endpgm")

    def role_dma(self):
        e = self.e
        done = self.label("Ldma_done")
        s3l = self.label("Ldma_s3")
        e("s_lshl_b32 s30, s3, 6")
        e("v_add_u32 v10, s30, v0")
        e("s_lshl_b32 s71, s3, 10")
        e("s_cmp_eq_u32 s68, 2")
        e(f"s_cbranch_scc1 {s3l}")
        self.c("wo rows h*256.., 112 columns: piece i = t*512 + tid, row = i/14")
        self.srd(20, 40, 3670016)
        e("s_lshr_b32 s30, s69, 2")
        e(f"s_mul_i32 s30, s30, {256 * 896}")
        e("s_and_b32 s31, s69, 3")
        e("s_mul_i32 s31, s31, 224")
        e("s_add_u32 s70, s30, s31")
        e("s_movk_i32 s31, 18725")
        for t in range(7):
            e(f"v_add_u32 v11, {t*512}, v10")
            e("v_mul_lo_u32 v12, v11, s31")
            e("v_lshrrev_b32 v12, 18, v12")
            e("v_mul_u32_u24 v13, 14, v12")
            e("v_sub_u32 v13, v11, v13")
            e("v_mul_u32_u24 v12, 0x380, v12")
            e("v_lshl_add_u32 v12, v13, 4, v12")
            e(f"s_add_u32 m0, s71, {LDS_W + t*8192}")
            e("s_nop 0")
            e("buffer_load_dwordx4 v12, s[20:23], s70 offen nt lds")
        e(f"s_branch {done}")
        e(f"{s3l}:")
        self.c("32 columns of w_gate and w_up (448 rows x 64 B each), 32 rows of w_down")
        e("v_lshrrev_b32 v11, 2, v10")
        e("v_mul_u32_u24 v11, 0xe00, v11")
        e("v_and_b32 v12, 3, v10")
        e("v_lshl_add_u32 v11, v12, 4, v11")
        e("s_lshl_b32 s70, s69, 6")
        for mtx, p in ((0, 44), (1, 46)):
            self.srd(20, p, 1605632)
            for t in range(4):
                lab = None
                if t == 3:
                    lab = self.label("Lskip")
                    e("s_cmp_gt_u32 s3, 3")
                    e(f"s_cbranch_scc1 {lab}")
                e(f"s_add_u32 s30, s70, {t*128*3584}")
                e(f"s_add_u32 m0, s71, {LDS_W + mtx*28672 + t*8192}")
                e("s_nop 0")
                e("buffer_load_dwordx4 v11, s[20:23], s30 offen nt lds")
                if lab:
                    e(f"{lab}:")
        self.srd(20, 48, 1605632)
        e("v_lshlrev_b32 v11, 4, v10")
        e("s_mul_i32 s70, s69, 28672")
        for t in range(4):
            lab = None
            if t == 3:
                lab = self.label("Lskip")
                e("s_cmp_gt_u32 s3, 3")
                e(f"s_cbranch_scc1 {lab}")
            e(f"s_add_u32 s30, s70, {t*8192}")
            e(f"s_add_u32 m0, s71, {LDS_W + 57344 + t*8192}")
            e("s_nop 0")
            e("buffer_load_dwordx4 v11, s[20:23], s30 offen nt lds")
            if lab:
                e(f"{lab}:")
        e(f"{done}:")

    def s2(self):
        e = self.e
        e("s_lshr_b32 s72, s69, 2")
        e(f"s_mul_i32 s30, s72, {32 * PO_BLK}")
        e(f"s_add_u32 s30, s30, {WS_PO}")
        e("v_and_b32 v7, 31, v0")
        e(f"v_mul_u32_u24 v7, {PO_BLK}, v7")
        e("v_add_u32 v7, s30, v7")
        e(f"s_mul_i32 s31, s3, {4 * PO_BLK}")
        e("s_add_u32 s30, s30, s31")
        e("v_lshlrev_b32 v5, 4, v0")
        e("v_add_u32 v6, s30, v5")
        e(f"v_add_u32 v9, {2 * PO_BLK}, v6")
        self.c("weight operand address: LDS_W + (32s + 8g + r)*224 + w*32 + (l&3)*8")
        e("v_bfe_u32 v3, v0, 2, 2")
        e("v_lshrrev_b32 v4, 4, v0")
        e("v_lshl_add_u32 v3, v4, 3, v3")
        e("v_mul_u32_u24 v3, 224, v3")
        e("v_and_b32 v11, 3, v0")
        e("v_lshl_add_u32 v3, v11, 3, v3")
        e("s_lshl_b32 s30, s3, 5")
        e(f"s_add_u32 s30, s30, {LDS_W}")
        e("v_add_u32 v3, s30, v3")
        e("s_lshl_b32 s30, s3, 10")
        e(f"s_add_u32 s31, s30, {LDS_O}")
        e("v_add_u32 v72, s31, v5")
        self.c("partial read: lane l takes granule 8*((l&15)>>1) + 2*(l>>4) + (l&1)")
        e("v_bfe_u32 v73, v0, 1, 3")
        e("v_lshlrev_b32 v73, 7, v73")
        e("v_lshl_add_u32 v73, v4, 5, v73")
        e("v_and_b32 v11, 1, v0")
        e("v_lshl_add_u32 v73, v11, 4, v73")
        e(f"v_add_u32 v73, {LDS_O}, v73")
        e("s_and_b32 s30, s69, 3")
        e("s_mul_i32 s30, s30, 448")
        e("s_lshl_b32 s31, s3, 6")
        e("s_add_u32 s30, s30, s31")
        e(f"s_mul_i32 s31, s72, {ROW}")
        e("s_add_u32 s30, s30, s31")
        e(f"s_add_u32 s30, s30, {WS_Y}")
        e("v_lshlrev_b32 v77, 2, v0")
        e("v_add_u32 v77, s30, v77")
        self.pack_dw_consts("v78", "v79", 66)
        e("s_lshl_b32 s70, s3, 2")
        e("s_add_u32 s71, s70, 1")
        e("s_add_u32 s73, s70, 2")
        e("s_add_u32 s78, s70, 3")
        e("s_waitcnt vmcnt(0)")
        e("s_barrier")
        e("s_cmp_gt_u32 s3, 6")
        e("s_cbranch_scc1 L_s2_now")
        for s in range(8):
            e(f"ds_read_b64_tr_b16 a[{4*s}:{4*s+1}], v3 offset:{s*7168}")
            e(f"ds_read_b64_tr_b16 a[{4*s+2}:{4*s+3}], v3 offset:{s*7168 + 896}")
        e("L_s2_now:")
        self.stamp(12)
        self.poll([(V(48, 4), "v7", 1024), (V(32, 4), "v6", 0), (V(36, 4), "v6", PO_BLK), (V(40, 4), "v9", 0),
                   (V(44, 4), "v9", PO_BLK)], 32, V(52, 5), "v95", unpack=False)
        self.stamp(15, "s7")
        self.stamp(6)
        self.unpack4(V(48, 4))
        e("v_mov_b32 v9, v51")
        self.unpack4(V(32, 4))
        e("v_max_f32_dpp v9, v9, v9 quad_perm:[1,0,3,2] row_mask:0xf bank_mask:0xf")
        self.unpack4(V(36, 4))
        e("v_max_f32_dpp v9, v9, v9 quad_perm:[2,3,0,1] row_mask:0xf bank_mask:0xf")
        self.unpack4(V(40, 4))
        e("v_max_f32_dpp v9, v9, v9 row_half_mirror row_mask:0xf bank_mask:0xf")
        self.unpack4(V(44, 4))
        e("v_max_f32_dpp v9, v9, v9 row_mirror row_mask:0xf bank_mask:0xf")
        e("s_nop 0")
        e("v_mov_b32 v10, v9")
        e("s_nop 1")
        e("v_permlane16_swap_b32 v9, v10")
        e("s_nop 1")
        e("v_max_f32 v9, v9, v10")
        e("v_sub_f32 v10, v51, v9")
        e("v_mul_f32 v10, s63, v10")
        e("v_exp_f32 v10, v10")
        e("s_nop 0")
        e("v_mul_f32 v11, v10, v48")
        e("v_readlane_b32 s74, v10, s70")
        e("v_readlane_b32 s75, v10, s71")
        e("v_readlane_b32 s76, v10, s73")
        e("v_readlane_b32 s77, v10, s78")
        e("v_add_f32_dpp v11, v11, v11 quad_perm:[1,0,3,2] row_mask:0xf bank_mask:0xf")
        for j in (0, 2):
            e(f"v_pk_mul_f32 v[{12+j}:{13+j}], s[74:75], v[{32+j}:{33+j}] op_sel_hi:[0,1]")
        for k in range(1, 4):
            sp = (74 + k) & ~1
            hi = (74 + k) & 1
            for j in (0, 2):
                e(f"v_pk_fma_f32 v[{12+j}:{13+j}], s[{sp}:{sp+1}], v[{32+4*k+j}:{33+4*k+j}], v[{12+j}:{13+j}] op_sel:[{hi},0,0] op_sel_hi:[{hi},1,1]")
        e("ds_write_b128 v72, v[12:15]")
        e("v_add_f32_dpp v11, v11, v11 quad_perm:[2,3,0,1] row_mask:0xf bank_mask:0xf")
        e("s_waitcnt lgkmcnt(0)")
        e("s_barrier")
        e("s_cmp_gt_u32 s3, 6")
        e("s_cbranch_scc1 L_end")
        for wv in range(8):
            e(f"ds_read_b128 v[{32+4*wv}:{35+4*wv}], v73 offset:{1024*wv}")
        e("v_add_f32_dpp v11, v11, v11 row_half_mirror row_mask:0xf bank_mask:0xf")
        e("s_nop 1")
        e("v_add_f32_dpp v11, v11, v11 row_mirror row_mask:0xf bank_mask:0xf")
        e("s_nop 0")
        e("v_mov_b32 v10, v11")
        e("s_nop 1")
        e("v_permlane16_swap_b32 v11, v10")
        e("s_nop 1")
        e("v_add_f32 v11, v11, v10")
        e("v_rcp_f32 v10, v11")
        for pair in range(4):
            e(f"s_waitcnt lgkmcnt({6 - 2*pair})")
            for j in (0, 2):
                e(f"v_pk_add_f32 v[{32+8*pair+j}:{33+8*pair+j}], v[{32+8*pair+j}:{33+8*pair+j}], v[{36+8*pair+j}:{37+8*pair+j}]")
        for j in (0, 2):
            e(f"v_pk_add_f32 v[{32+j}:{33+j}], v[{32+j}:{33+j}], v[{40+j}:{41+j}]")
            e(f"v_pk_add_f32 v[{48+j}:{49+j}], v[{48+j}:{49+j}], v[{56+j}:{57+j}]")
        e("v_fma_f32 v9, -v10, v11, 1.0")
        e("v_fma_f32 v10, v9, v10, v10")
        for j in (0, 2):
            e(f"v_pk_add_f32 v[{32+j}:{33+j}], v[{32+j}:{33+j}], v[{48+j}:{49+j}]")
        for j in (0, 2):
            e(f"v_pk_mul_f32 v[{32+j}:{33+j}], v[10:11], v[{32+j}:{33+j}] op_sel_hi:[0,1]")
        e("v_cvt_pk_bf16_f32 v12, v32, v33")
        e("v_cvt_pk_bf16_f32 v13, v34, v35")
        e("s_nop 1")

        def amov(s):
            b = 40 + 4 * (s % 2)
            e(f"v_mov_b32_dpp v{b}, v12 row_newbcast:{2*s} row_mask:0xf bank_mask:0xf")
            e(f"v_mov_b32_dpp v{b+1}, v13 row_newbcast:{2*s} row_mask:0xf bank_mask:0xf")
            e(f"v_mov_b32_dpp v{b+2}, v12 row_newbcast:{2*s+1} row_mask:0xf bank_mask:0xf")
            e(f"v_mov_b32_dpp v{b+3}, v13 row_newbcast:{2*s+1} row_mask:0xf bank_mask:0xf")

        amov(0)
        for s in range(8):
            if s < 7:
                amov(s + 1)
            else:
                e("s_nop 0")
            b = 40 + 4 * (s % 2)
            cc = "0" if s == 0 else "v[16:19]"
            e(f"v_mfma_f32_16x16x32_bf16 v[16:19], v[{b}:{b+3}], a[{4*s}:{4*s+3}], {cc}")
        e("s_nop 7")
        self.pack_dw("v24", "v16", "v25", "v78", "v79", "s[66:67]")
        e("s_mov_b64 exec, 0xffff")
        e("buffer_store_dword v24, v77, s[16:19], 0 offen sc1")
        e("s_mov_b64 exec, -1")
        self.stamp(7)

    def s3(self):
        e = self.e
        self.c("lane (gl = l&15, row = l>>4) ends up owning column 64w + 4gl + row of h1")
        self.srd(24, 32, 896)
        e("v_and_b32 v9, 15, v0")
        e("v_lshrrev_b32 v4, 4, v0")
        e("v_lshl_add_u32 v5, v9, 2, v4")
        e("s_lshl_b32 s30, s3, 6")
        e("v_add_lshl_u32 v5, v5, s30, 1")
        e("buffer_load_ushort v80, v5, s[24:27], 0 offen")
        e(f"v_add_u32 v86, {LDS_H}, v5")
        e(f"v_mul_u32_u24 v8, {4*ROW}, v4")
        e("v_lshl_add_u32 v8, v9, 4, v8")
        e("s_lshl_b32 s30, s3, 8")
        e(f"s_add_u32 s30, s30, {WS_Y}")
        e("v_add_u32 v8, s30, v8")
        e(f"v_add_u32 v10, {2*ROW}, v8")
        self.c("gate/up operand address: LDS_W + m*28672 + (32s + 8g + r)*64 + ct*32 + (l&3)*8")
        e("v_bfe_u32 v3, v0, 2, 2")
        e("v_lshl_add_u32 v3, v4, 3, v3")
        e("v_lshlrev_b32 v6, 6, v3")
        e("v_and_b32 v11, 3, v0")
        e("v_lshl_add_u32 v6, v11, 3, v6")
        e("s_and_b32 s30, s3, 1")
        e("s_mul_i32 s30, s30, 28672")
        e("s_bfe_u32 s31, s3, 0x10001")
        e("s_lshl_b32 s31, s31, 5")
        e("s_add_u32 s30, s30, s31")
        e("s_lshr_b32 s31, s3, 2")
        e(f"s_mul_i32 s31, s31, {7 * 2048}")
        e("s_add_u32 s30, s30, s31")
        e(f"s_add_u32 s30, s30, {LDS_W}")
        e("v_add_u32 v6, s30, v6")
        e("v_mul_u32_u24 v7, 0x380, v3")
        e("v_lshl_add_u32 v7, v11, 3, v7")
        e("s_lshl_b32 s30, s3, 7")
        e(f"s_add_u32 s30, s30, {LDS_W + 57344}")
        e("v_add_u32 v7, s30, v7")
        e("s_lshr_b32 s30, s3, 2")
        e("s_lshl_b32 s30, s30, 8")
        e("s_and_b32 s31, s3, 1")
        e("s_lshl_b32 s31, s31, 7")
        e("s_add_u32 s30, s30, s31")
        e("s_bfe_u32 s31, s3, 0x10001")
        e("s_lshl_b32 s31, s31, 6")
        e("s_add_u32 s30, s30, s31")
        e(f"s_add_u32 s30, s30, {LDS_GU}")
        e("v_lshl_add_u32 v88, v9, 2, s30")
        e("s_lshr_b32 s30, s3, 2")
        e("s_mul_i32 s30, s30, 448")
        e(f"s_add_u32 s30, s30, {LDS_H}")
        e("v_lshl_add_u32 v89, v4, 4, s30")
        self.c("activation lane map: f = 8*(l>>4) + (l&7)")
        e("v_and_b32 v11, 7, v0")
        e("v_lshl_add_u32 v90, v4, 3, v11")
        e("v_lshlrev_b32 v90, 2, v90")
        e(f"v_add_u32 v90, {LDS_GU}, v90")
        e("v_and_b32 v11, 1, v0")
        e("v_mov_b32 v91, 0x01000504")
        e("v_mov_b32 v92, 0x05040100")
        e("v_cmp_eq_u32 vcc, 1, v11")
        e(f"s_mul_i32 s30, s69, {ROW}")
        e("s_lshl_b32 s31, s3, 8")
        e("v_cndmask_b32 v91, v91, v92, vcc")
        e("s_add_u32 s30, s30, s31")
        e(f"s_add_u32 s30, s30, {WS_Z}")
        e("v_lshl_add_u32 v93, v0, 2, s30")
        self.pack_dw_consts("v60", "v61", 46)
        e("s_lshl_b32 s30, s3, 3")
        e(f"s_add_u32 s30, s30, {LDS_ST}")
        e("v_lshl_add_u32 v63, v4, 2, s30")
        e("v_mov_b32 v40, 0")
        e("s_mov_b32 s48, 0x00010001")
        e("s_mov_b32 s49, 0")
        e("s_mov_b64 exec, s[48:49]")
        e("ds_write_b32 v63, v40")
        e("s_mov_b64 exec, -1")
        self.c("stage-4 gather address: Z + (8i + (l>>3))*ROW + (j3>>2)*128 + (l&7)*16")
        e("v_lshrrev_b32 v62, 3, v0")
        e(f"v_mul_u32_u24 v62, {ROW}, v62")
        e("v_and_b32 v12, 7, v0")
        e("v_lshl_add_u32 v62, v12, 4, v62")
        e("s_lshr_b32 s30, s69, 2")
        e("s_lshl_b32 s30, s30, 7")
        e(f"s_add_u32 s30, s30, {WS_Z}")
        e("v_add_u32 v62, s30, v62")
        e("s_mov_b32 s40, 0xffff0000")
        e("s_mov_b32 s41, 0")
        e("s_mov_b32 s42, 0")
        e("s_mov_b32 s43, 0x0000ffff")
        e("s_mov_b32 s44, 0")
        e("s_mov_b32 s45, 0xffff0000")
        e("v_mov_b32 v81, 0x3d372713")
        e("s_waitcnt vmcnt(0)")
        e("s_barrier")
        for s in range(7):
            e(f"ds_read_b64_tr_b16 a[{4*s}:{4*s+1}], v6 offset:{s*2048}")
            e(f"ds_read_b64_tr_b16 a[{4*s+2}:{4*s+3}], v6 offset:{s*2048 + 256}")
        e("s_cmp_gt_u32 s3, 6")
        e("s_cbranch_scc1 L_s3_notr")
        for t in range(4):
            e(f"ds_read_b64_tr_b16 a[{32+4*t}:{33+4*t}], v7 offset:{t*32}")
            e(f"ds_read_b64_tr_b16 a[{34+4*t}:{35+4*t}], v7 offset:{t*32 + 3584}")
        e("L_s3_notr:")
        self.c("column sums of this wave's gate/up tile over its half of K (vector of ones)")
        for j in range(4):
            e(f"v_mov_b32 v{20+j}, 0x3f803f80")
        e("v_lshlrev_b32 v80, 16, v80")
        e("s_waitcnt lgkmcnt(0)")
        for s in range(7):
            cc = "0" if s == 0 else "v[16:19]"
            e(f"v_mfma_f32_16x16x32_bf16 v[16:19], v[20:23], a[{4*s}:{4*s+3}], {cc}")
        e("s_nop 7")
        e("s_mov_b64 exec, 0xffff")
        e("ds_write_b32 v88, v16 offset:512")
        e("s_mov_b64 exec, -1")
        e("s_waitcnt lgkmcnt(0)")
        e("s_barrier")
        e("ds_read_b32 v16, v90 offset:512")
        e("ds_read_b32 v17, v90 offset:768")
        e("ds_read_b32 v18, v90 offset:640")
        e("ds_read_b32 v19, v90 offset:896")
        e("s_waitcnt lgkmcnt(0)")
        e("v_add_f32 v94, v16, v17")
        e("v_add_f32 v84, v18, v19")
        e("s_cmp_gt_u32 s3, 6")
        e("s_cbranch_scc1 L_s3_nogather")
        self.stamp(12)
        self.poll([(V(32, 4), "v8", 0), (V(36, 4), "v8", ROW), (V(40, 4), "v10", 0), (V(44, 4), "v10", ROW)],
                  32, V(48, 4), "v12")
        self.stamp(15, "s7")
        self.stamp(6)
        for j in (0, 2):
            e(f"v_pk_add_f32 v[{32+j}:{33+j}], v[{32+j}:{33+j}], v[{36+j}:{37+j}]")
            e(f"v_pk_add_f32 v[{40+j}:{41+j}], v[{40+j}:{41+j}], v[{44+j}:{45+j}]")
        for j in (0, 2):
            e(f"v_pk_add_f32 v[{32+j}:{33+j}], v[{32+j}:{33+j}], v[{40+j}:{41+j}]")
        self.rowscatter4(V(32, 4))
        self.rne("v32", "v32")
        e("v_add_f32 v32, v32, v80")
        e("v_cvt_pk_bf16_f32 v36, v32, v32")
        e("ds_write_b16 v86, v36")
        e("v_lshlrev_b32 v40, 16, v36")
        e("v_mul_f32 v41, v40, v40")
        e("s_nop 0")
        for st in ("quad_perm:[1,0,3,2]", "quad_perm:[2,3,0,1]", "row_half_mirror", "row_mirror"):
            e(f"v_add_f32_dpp v40, v40, v40 {st} row_mask:0xf bank_mask:0xf")
            e(f"v_add_f32_dpp v41, v41, v41 {st} row_mask:0xf bank_mask:0xf")
            e("s_nop 0")
        e("s_nop 0")
        e("v_permlane16_swap_b32 v40, v41")
        e("s_nop 0")
        e("v_add_f32 v40, v40, v41")
        e("v_mov_b32 v41, v40")
        e("s_nop 1")
        e("v_permlane32_swap_b32 v40, v41")
        e("s_nop 0")
        e("v_add_f32 v40, v40, v41")
        e("s_mov_b64 exec, s[48:49]")
        e("ds_write_b32 v63, v40")
        e("s_mov_b64 exec, -1")
        e("L_s3_nogather:")
        e("s_waitcnt lgkmcnt(0)")
        e("s_barrier")
        regs = [64, 68, 72, 76, 48, 52, 56]
        for s in range(7):
            e(f"ds_read_b128 v[{regs[s]}:{regs[s]+3}], v89 offset:{64*s}")
        e(f"v_mov_b32 v8, {LDS_ST}")
        for k in range(4):
            e(f"ds_read_b128 v[{24+4*k}:{27+4*k}], v8 offset:{16*k}")
        for s in range(7):
            e(f"s_waitcnt lgkmcnt({10-s})")
            cc = "0" if s == 0 else "v[16:19]"
            e(f"v_mfma_f32_16x16x32_bf16 v[16:19], v[{regs[s]}:{regs[s]+3}], a[{4*s}:{4*s+3}], {cc}")
        e("s_waitcnt lgkmcnt(0)")
        for k in range(4):
            e(f"v_pk_add_f32 v[{24+4*k}:{25+4*k}], v[{24+4*k}:{25+4*k}], v[{26+4*k}:{27+4*k}]")
        e("v_pk_add_f32 v[24:25], v[24:25], v[28:29]")
        e("v_pk_add_f32 v[32:33], v[32:33], v[36:37]")
        e("v_pk_add_f32 v[24:25], v[24:25], v[32:33]")
        e(f"v_mul_f32 v44, 0x{F_INV448:08x}, v24")
        e(f"v_mul_f32 v42, 0x{F_INV448:08x}, v25")
        e("s_mov_b64 exec, 0xffff")
        e("ds_write_b32 v88, v16")
        e("s_mov_b64 exec, -1")
        e("v_fma_f32 v42, -v44, v44, v42")
        e("v_max_f32 v42, 0, v42")
        e("v_cvt_pk_bf16_f32 v40, v44, v42")
        e("v_and_b32 v42, 0xffff0000, v40")
        e("v_lshlrev_b32 v40, 16, v40")
        e(f"v_add_f32 v42, 0x{F_EPS:08x}, v42")
        self.rne("v42", "v42")
        e("v_sqrt_f32 v41, v42")
        e("s_nop 0")
        self.rne("v41", "v41")
        e("v_rcp_f32 v42, v41")
        e("s_waitcnt lgkmcnt(0)")
        e("s_barrier")
        e("s_cmp_gt_u32 s3, 6")
        e("s_cbranch_scc1 L_s3_w7")
        e("ds_read_b32 v16, v90")
        e("ds_read_b32 v17, v90 offset:256")
        e("ds_read_b32 v18, v90 offset:128")
        e("ds_read_b32 v19, v90 offset:384")
        e("s_waitcnt lgkmcnt(2)")
        e("v_add_f32 v16, v16, v17")
        e("v_fma_f32 v16, -v40, v94, v16")
        e("s_waitcnt lgkmcnt(0)")
        e("v_add_f32 v18, v18, v19")
        e("v_fma_f32 v18, -v40, v84, v18")
        e("v_mul_f32 v16, v16, v42")
        e("v_mul_f32 v18, v18, v42")
        e("v_cvt_pk_bf16_f32 v17, v16, v18")
        e("v_lshlrev_b32 v16, 16, v17")
        e("v_and_b32 v18, 0xffff0000, v17")
        e("v_mul_f32 v17, v16, v16")
        e("v_mul_f32 v17, v17, v16")
        e("v_fma_f32 v17, v17, v81, v16")
        e("v_mul_f32 v17, 0xc0135761, v17")
        e("v_min_f32 v17, 0x42fc0000, v17")
        e("v_exp_f32 v17, v17")
        e("s_nop 0")
        e("v_add_f32 v17, 1.0, v17")
        e("v_rcp_f32 v19, v17")
        e("s_nop 0")
        e("v_mul_f32 v20, v16, v19")
        self.rne("v20", "v20")
        e("v_mul_f32 v20, v20, v18")
        e("v_cvt_pk_bf16_f32 v20, v20, v20")
        e("s_nop 1")
        e("v_mov_b32_dpp v21, v20 quad_perm:[1,0,3,2] row_mask:0xf bank_mask:0xf")
        e("v_perm_b32 v20, v20, v21, v91")
        e("s_nop 1")
        for jj in range(4):
            e(f"v_mov_b32_dpp v{16+jj}, v20 row_newbcast:{2*jj} row_mask:0xf bank_mask:0xf")
        e("s_nop 1")
        for t in range(4):
            e(f"v_mfma_f32_16x16x32_bf16 v[{32+4*t}:{35+4*t}], v[16:19], a[{32+4*t}:{35+4*t}], 0")
        e("s_nop 5")
        e("v_cndmask_b32 v32, v32, v36, s[40:41]")
        e("v_cndmask_b32 v32, v32, v40, s[42:43]")
        e("s_nop 0")
        e("v_cndmask_b32 v32, v32, v44, s[44:45]")
        e("s_nop 1")
        self.pack_dw("v24", "v32", "v25", "v60", "v61", "s[46:47]")
        e("buffer_store_dword v24, v93, s[16:19], 0 offen sc1")
        self.stamp(7)
        e("s_waitcnt vmcnt(0)")
        e("s_barrier")
        e("s_branch L_end")
        self.c("---- stage 4: wave 7 of every 4th FFN workgroup sums 56 partial rows for 32 output columns ----")
        e("L_s3_w7:")
        e("s_and_b32 s30, s69, 3")
        e("s_cmp_lg_u32 s30, 0")
        e("s_cbranch_scc1 L_end")
        e("v_and_b32 v12, 7, v0")
        e("v_lshl_add_u32 v5, v12, 2, v4")
        e("s_lshl_b32 s30, s69, 3")
        e("v_add_lshl_u32 v5, v5, s30, 1")
        e(f"v_add_u32 v8, {LDS_H}, v5")
        e("ds_read_u16 v32, v8")
        self.srd(24, 50, 896)
        loads = []
        for i in range(7):
            e(f"v_add_u32 v{16+i}, {i*8*ROW}, v62")
            loads.append((V(64 + 4 * i, 4), f"v{16+i}", 0))
        e("s_mov_b32 s48, 0x00ff00ff")
        e("s_mov_b32 s49, 0x00ff00ff")
        e("s_waitcnt lgkmcnt(0)")
        e("v_lshlrev_b32 v32, 16, v32")
        e("s_barrier")
        self.stamp(10)
        self.poll(loads, 32, V(24, 7), "v95")
        self.stamp(11, "s7")
        self.stamp(8)
        for j in (0, 2):
            e(f"v_pk_add_f32 v[{64+j}:{65+j}], v[{64+j}:{65+j}], v[{68+j}:{69+j}]")
            e(f"v_pk_add_f32 v[{72+j}:{73+j}], v[{72+j}:{73+j}], v[{76+j}:{77+j}]")
            e(f"v_pk_add_f32 v[{80+j}:{81+j}], v[{80+j}:{81+j}], v[{84+j}:{85+j}]")
        for j in (0, 2):
            e(f"v_pk_add_f32 v[{64+j}:{65+j}], v[{64+j}:{65+j}], v[{72+j}:{73+j}]")
            e(f"v_pk_add_f32 v[{80+j}:{81+j}], v[{80+j}:{81+j}], v[{88+j}:{89+j}]")
        for j in (0, 2):
            e(f"v_pk_add_f32 v[{64+j}:{65+j}], v[{64+j}:{65+j}], v[{80+j}:{81+j}]")
        e("s_nop 0")
        for j in range(4):
            e(f"v_add_f32_dpp v{64+j}, v{64+j}, v{64+j} row_ror:8 row_mask:0xf bank_mask:0xf")
        self.rowscatter4(V(64, 4))
        self.rne("v64", "v64")
        e("v_add_f32 v64, v64, v32")
        e("v_cvt_pk_bf16_f32 v68, v64, v64")
        e("s_mov_b64 exec, s[48:49]")
        e("buffer_store_short v68, v5, s[24:27], 0 offen")
        e("s_cmp_lg_u32 s69, 0")
        e("s_cbranch_scc1 L_s4_done")
        e("v_mov_b32 v8, s6")
        e("v_mov_b32 v9, 0")
        e("s_mov_b64 exec, 1")
        e("buffer_store_dword v8, v9, s[16:19], 0 offen sc1")
        e("L_s4_done:")
        e("s_mov_b64 exec, -1")
        self.stamp(9)

    def text(self):
        self.build()
        src = HDR + f"; @launch grid=(256,1,1) block=(512,1,1) lds={LDS_TOTAL}\n"
        src += '.amdgcn_target "amdgcn-amd-amdhsa--gfx950"\n.text\n'
        src += f".globl {KERN}\n.p2align 8\n.type {KERN},@function\n{KERN}:\n"
        src += "\n".join(self.o) + "\n"
        nacc = self.NS * 4
        src += f""".section .rodata,"a"
.p2align 6
.amdhsa_kernel {KERN}
  .amdhsa_next_free_vgpr {96 + nacc}
  .amdhsa_next_free_sgpr 102
  .amdhsa_accum_offset 96
  .amdhsa_group_segment_fixed_size 0
  .amdhsa_kernarg_size 96
  .amdhsa_user_sgpr_count 2
  .amdhsa_user_sgpr_kernarg_segment_ptr 1
  .amdhsa_system_sgpr_workgroup_id_x 1
.end_amdhsa_kernel
"""
        return src


if __name__ == "__main__":
    import argparse
    ap = argparse.ArgumentParser()
    ap.add_argument("-o", default="k10.s")
    ap.add_argument("--NS", type=int, default=40)
    ap.add_argument("--W0", type=int, default=8)
    ap.add_argument("--W", type=int, default=6)
    ap.add_argument("--stamps", action="store_true")
    ap.add_argument("--light", action="store_true")
    a = ap.parse_args()
    g = Gen(NS=a.NS, W0=a.W0, W=a.W, stamps=a.stamps, light=a.light)
    open(a.o, "w").write(g.text())
```

```python
NAME = "sequential_preLN__gqa_block_cached__geglu_ffn__decode"
KERN = NAME + "_kernel"
HDR = open("cdna_kernels/%s.s.ref" % NAME).read().split("; Override launch")[0]

WS_QX = 0x1000
WS_PO = 0x20000
PO_BLK = 1152
WS_Y = 0x100000
WS_Z = 0x120000
ROW = 2048
WS_STAMP = 64 << 20
WS_SIZE = 512 << 20

LDS_W = 0
LDS_O = 86016
LDS_ML = LDS_O + 16384
LDS_Q = LDS_ML + 128
LDS_H = LDS_Q + 1024
LDS_XN = LDS_H + 1024
LDS_GU = LDS_XN + 1024
LDS_CS = LDS_GU + 512
LDS_ST = LDS_CS + 512
LDS_TOTAL = LDS_ST + 64

CEXP = 0x3DB8AA3B
F_INV448 = 0x3B124925
F_448 = 0x43E00000
F_EPS = 0x3727C5AC
POLL_MAX = 0x40000


def V(a, n):
    return [f"v{a+i}" for i in range(n)]


class Gen:
    def __init__(self, NS=40, W0=8, W=6, stamps=False, light=False):
        self.o = []
        self.NS, self.W0, self.W = NS, W0, W
        self.stamps = stamps
        self.light = light
        self.lab = 0
        self.outfl = ' sc1'
        self.bo2 = None
        self.bo3 = None
        self.wqfl = ' nt'
        self.W00 = W0
        self.W01 = NS
        self.x_noq = False
        self.x_norole = False

    def e(self, s):
        for line in s.strip("\n").split("\n"):
            line = line.strip()
            if not line:
                continue
            self.o.append(line if line.endswith(":") or line.startswith(";") else "    " + line)

    def c(self, text):
        self.o.append("    ; " + text)

    def label(self, p="L"):
        self.lab += 1
        return f"{p}_{self.lab}"

    def stamp(self, k, src=None):
        if not self.stamps or (self.light and k not in (4, 9, 14)):
            return
        if src is None:
            self.e("s_memrealtime s[98:99]")
            self.e("s_waitcnt lgkmcnt(0)")
            self.e(f"s_mov_b32 s{80+k}, s98")
        else:
            self.e(f"s_mov_b32 s{80+k}, {src}")

    def stamp_flush(self):
        if not self.stamps:
            return
        e = self.e
        e("s_mov_b64 exec, -1")
        for k in range(16):
            e(f"v_mov_b32 v{32+k}, s{80+k}")
        e("s_lshl_b32 s30, s2, 3")
        e("s_add_u32 s30, s30, s3")
        e("s_lshl_b32 s30, s30, 6")
        e(f"s_add_u32 s30, s30, {WS_STAMP}")
        e("v_mov_b32 v3, s30")
        e("s_mov_b64 exec, 1")
        for k in range(4):
            e(f"buffer_store_dwordx4 v[{32+4*k}:{35+4*k}], v3, s[16:19], 0 offen offset:{16*k}")

    def rne(self, dst, src):
        self.e(f"v_cvt_pk_bf16_f32 {dst}, {src}, {src}")
        self.e(f"v_lshlrev_b32 {dst}, 16, {dst}")

    def wave_sum1(self, r):
        self.e("s_nop 1")
        for st in ("row_shr:1 row_mask:0xf bank_mask:0xf bound_ctrl:0", "row_shr:2 row_mask:0xf bank_mask:0xf bound_ctrl:0",
                   "row_shr:4 row_mask:0xf bank_mask:0xf bound_ctrl:0", "row_shr:8 row_mask:0xf bank_mask:0xf bound_ctrl:0",
                   "row_bcast:15 row_mask:0xa bank_mask:0xf", "row_bcast:31 row_mask:0xc bank_mask:0xf"):
            self.e(f"v_add_f32_dpp {r}, {r}, {r} {st}")
            self.e("s_nop 1")

    def pack4(self, w, v):
        self.e(f"v_perm_b32 {w[0]}, {v[0]}, {v[3]}, s58")
        self.e(f"v_perm_b32 {w[1]}, {v[1]}, {v[3]}, s59")
        self.e(f"v_perm_b32 {w[2]}, {v[2]}, {v[3]}, s60")
        self.e(f"v_add3_u32 {w[3]}, {w[0]}, {w[1]}, {w[2]}")
        self.e(f"v_sub_u32 {w[3]}, s6, {w[3]}")

    def pack_dw(self, out, v, tmp, selv, vtag, m3):
        e = self.e
        e(f"v_mov_b32_dpp {tmp}, {v} quad_perm:[3,3,3,3] row_mask:0xf bank_mask:0xf")
        e(f"v_perm_b32 {out}, {v}, {tmp}, {selv}")
        e("s_nop 1")
        e(f"v_add_u32_dpp {tmp}, {out}, {out} quad_perm:[1,0,3,2] row_mask:0xf bank_mask:0xf")
        e("s_nop 1")
        e(f"v_add_u32_dpp {tmp}, {tmp}, {tmp} quad_perm:[2,3,0,1] row_mask:0xf bank_mask:0xf")
        e(f"v_sub_u32 {tmp}, {vtag}, {tmp}")
        e(f"v_cndmask_b32 {out}, {out}, {tmp}, {m3}")

    def pack_dw_consts(self, selv, vtag, m3lo):
        e = self.e
        e(f"s_mov_b32 s{m3lo}, 0x88888888")
        e(f"s_mov_b32 s{m3lo+1}, 0x88888888")
        e(f"v_and_b32 {selv}, 3, v0")
        e(f"v_add_u32 {selv}, 0x07060501, {selv}")
        e(f"v_mov_b32 {vtag}, 0x0c0c0c0c")
        e(f"v_cndmask_b32 {selv}, {selv}, {vtag}, s[{m3lo}:{m3lo+1}]")
        e(f"v_mov_b32 {vtag}, s6")

    def unpack4(self, w):
        self.e(f"v_perm_b32 {w[3]}, {w[1]}, {w[0]}, s61")
        self.e(f"v_perm_b32 {w[3]}, {w[2]}, {w[3]}, s62")

    def poll(self, loads, sbase, temps, acc, unpack=True, backoff=None):
        e = self.e
        n = len(loads)
        lp = self.label("Lpoll")
        dn = self.label("Lpolled")
        sm = [f"s[{sbase+2*k}:{sbase+2*k+1}]" for k in range(n)]
        e("s_mov_b32 s7, 0")
        for regs, va, off in loads:
            r0 = int(regs[0][1:])
            e(f"buffer_load_dwordx4 v[{r0}:{r0+3}], {va}, s[16:19], 0 offen offset:{off} sc1")
        e(f"s_branch {lp}w")
        e(f"{lp}:")
        for k, (regs, va, off) in enumerate(loads):
            sk = self.label("Lsk")
            r0 = int(regs[0][1:])
            e(f"s_cmp_eq_u64 {sm[k]}, 0")
            e(f"s_cbranch_scc1 {sk}")
            e(f"s_mov_b64 exec, {sm[k]}")
            e(f"buffer_load_dwordx4 v[{r0}:{r0+3}], {va}, s[16:19], 0 offen offset:{off} sc1")
            e(f"{sk}:")
        e("s_mov_b64 exec, -1")
        e(f"{lp}w:")
        e("s_waitcnt vmcnt(0)")
        for k, (w, va, off) in enumerate(loads):
            e(f"v_add3_u32 {temps[k]}, {w[0]}, {w[1]}, {w[2]}")
        for k, (w, va, off) in enumerate(loads):
            e(f"v_add3_u32 {temps[k]}, {temps[k]}, {w[3]}, s57")
        rest = list(temps[:n])
        e(f"v_or3_b32 {acc}, {rest[0]}, {rest[1]}, {rest[2]}")
        rest = rest[3:]
        while rest:
            if len(rest) >= 2:
                e(f"v_or3_b32 {acc}, {acc}, {rest[0]}, {rest[1]}")
                rest = rest[2:]
            else:
                e(f"v_or_b32 {acc}, {acc}, {rest[0]}")
                rest = rest[1:]
        e(f"v_cmp_ne_u32 vcc, 0, {acc}")
        e("s_add_u32 s7, s7, 1")
        e(f"s_cbranch_vccz {dn}")
        for k in range(n):
            e(f"v_cmp_ne_u32 {sm[k]}, 0, {temps[k]}")
        if backoff:
            sk = self.label("Lnb")
            e("s_bcnt1_i32_b64 s30, vcc")
            e(f"s_cmp_le_u32 s30, {backoff[0]}")
            e(f"s_cbranch_scc1 {sk}")
            e(f"s_sleep {backoff[1]}")
            e(f"{sk}:")
        e(f"s_cmp_gt_u32 s7, 0x{POLL_MAX:x}")
        e(f"s_cbranch_scc0 {lp}")
        e(f"{dn}:")
        if unpack:
            for regs, va, off in loads:
                self.unpack4(regs)

    def div448(self, dst, src, a, b):
        e = self.e
        e(f"v_mov_b32 {a}, {src}")
        e(f"v_mul_f32 {dst}, 0x{F_INV448:08x}, {a}")
        e(f"v_mov_b32 {b}, 0x{F_448:08x}")
        e(f"v_fma_f32 {a}, -{dst}, {b}, {a}")
        e(f"v_mov_b32 {b}, 0x{F_INV448:08x}")
        e(f"v_fma_f32 {dst}, {a}, {b}, {dst}")

    def ln_stats(self, f, vm, t):
        e = self.e
        e(f"v_add_f32 {t[0]}, {f[0]}, {f[1]}")
        e(f"v_add_f32 {t[1]}, {f[2]}, {f[3]}")
        e(f"v_add_f32 {t[2]}, {f[4]}, {f[5]}")
        e(f"v_add_f32 {t[3]}, {f[6]}, {f[7]}")
        e(f"v_add_f32 {t[0]}, {t[0]}, {t[1]}")
        e(f"v_add_f32 {t[2]}, {t[2]}, {t[3]}")
        e(f"v_add_f32 {t[0]}, {t[0]}, {t[2]}")
        self.wave_sum1(t[0])
        e(f"v_readlane_b32 s30, {t[0]}, 63")
        e("s_nop 1")
        self.div448(t[4], "s30", t[3], t[5])
        e(f"v_sub_f32 {t[0]}, {f[0]}, {t[4]}")
        e(f"v_mul_f32 {t[1]}, {t[0]}, {t[0]}")
        for i in range(1, 8):
            e(f"v_sub_f32 {t[0]}, {f[i]}, {t[4]}")
            e(f"v_fma_f32 {t[1]}, {t[0]}, {t[0]}, {t[1]}")
        e(f"v_mul_f32 {t[1]}, {t[1]}, {vm}")
        self.wave_sum1(t[1])
        e(f"v_readlane_b32 s30, {t[1]}, 63")
        e("s_nop 1")
        self.div448(t[2], "s30", t[3], t[5])
        self.rne(t[0], t[4])
        self.rne(t[2], t[2])
        e(f"v_add_f32 {t[2]}, 0x{F_EPS:08x}, {t[2]}")
        self.rne(t[2], t[2])
        e(f"v_sqrt_f32 {t[1]}, {t[2]}")
        e("s_nop 0")
        self.rne(t[1], t[1])
        e(f"v_rcp_f32 {t[2]}, {t[1]}")
        e("s_nop 0")

    def ln_apply(self, dst, x, t, a, b):
        e = self.e
        e(f"v_sub_f32 {a}, {x}, {t[0]}")
        self.rne(a, a)
        e(f"v_mul_f32 {b}, {a}, {t[2]}")
        e(f"v_fma_f32 {a}, -{b}, {t[1]}, {a}")
        e(f"v_fma_f32 {b}, {a}, {t[2]}, {b}")
        self.rne(dst, b)

    def unpack8(self, f, src):
        for i in range(4):
            self.e(f"v_lshlrev_b32 {f[2*i]}, 16, {src[i]}")
            self.e(f"v_and_b32 {f[2*i+1]}, 0xffff0000, {src[i]}")

    def xsum(self, regs, tmps, op="v_add_f32"):
        e = self.e
        for sw in ("v_permlane16_swap_b32", "v_permlane32_swap_b32"):
            for r, t in zip(regs, tmps):
                e(f"v_mov_b32 {t}, {r}")
            if len(regs) < 3:
                e("s_nop 1")
            for r, t in zip(regs, tmps):
                e(f"{sw} {r}, {t}")
            if len(regs) < 3:
                e("s_nop 1")
            for r, t in zip(regs, tmps):
                e(f"{op} {r}, {r}, {t}")

    def rowscatter4(self, r):
        e = self.e
        e("s_nop 1")
        e(f"v_permlane16_swap_b32 {r[0]}, {r[1]}")
        e(f"v_permlane16_swap_b32 {r[2]}, {r[3]}")
        e("s_nop 0")
        e(f"v_add_f32 {r[0]}, {r[0]}, {r[1]}")
        e(f"v_add_f32 {r[2]}, {r[2]}, {r[3]}")
        e("s_nop 1")
        e(f"v_permlane32_swap_b32 {r[0]}, {r[2]}")
        e("s_nop 0")
        e(f"v_add_f32 {r[0]}, {r[0]}, {r[2]}")

    def tag(self):
        self.e("s_mul_i32 s6, s6, 0x9E3779B1")
        self.e("s_add_u32 s6, s6, 0x7F4A7C15")
        self.e("s_or_b32 s6, s6, 1")
        self.e("s_sub_u32 s57, 0, s6")

    def srd(self, base, p, size):
        e = self.e
        e(f"s_mov_b32 s{base}, s{p}")
        e(f"s_mov_b32 s{base+1}, s{p+1}")
        e(f"s_mov_b32 s{base+2}, 0x{size:x}")
        e(f"s_mov_b32 s{base+3}, 0x20000")

    def consts(self):
        e = self.e
        e("s_mov_b32 s58, 0x07060501")
        e("s_mov_b32 s59, 0x07060502")
        e("s_mov_b32 s60, 0x07060503")
        e("s_mov_b32 s61, 0x0c04000c")
        e("s_mov_b32 s62, 0x04020100")
        e(f"s_mov_b32 s63, 0x{CEXP:08x}")

    def stream_load(self, i):
        n, half = (i % 64) >> 1, i & 1
        off = n * 2048 + half * 256
        hi, lo = off & ~4095, off & 4095
        if self.cur_so != hi:
            self.e(f"s_add_u32 s29, s28, {hi}")
            self.cur_so = hi
        slot = (i % self.NS) * 4
        srd, vo = ("s[8:11]", "v1") if i < 64 else ("s[12:15]", "v2")
        self.e(f"buffer_load_dwordx4 a[{slot}:{slot+3}], {vo}, {srd}, s29 offen offset:{lo} nt")

    def slot(self, i):
        s = (i % self.NS) * 4
        return f"a[{s}:{s+3}]"

    def build(self):
        e, c = self.e, self.c
        NS, W0, W = self.NS, self.W0, self.W
        W00 = self.W00
        self.W01 = min(self.W01, NS)
        self.cur_so = None
        if self.stamps:
            e("s_memrealtime s[96:97]")
            for k in range(16):
                e(f"s_mov_b32 s{80+k}, 0")
        c("workgroup = (kv head g = id&7, key chunk = id>>3); 8 waves, 128 keys each; extra workgroups leave at once")
        e("s_cmp_ge_u32 s2, 256")
        e("s_cbranch_scc1 L_exit")
        e("s_load_dwordx16 s[32:47], s[0:1], 0")
        e("s_load_dwordx8 s[48:55], s[0:1], 64")
        e("v_lshrrev_b32 v3, 6, v0")
        e("v_and_b32 v0, 63, v0")
        e("s_and_b32 s4, s2, 7")
        e("v_readfirstlane_b32 s3, v3")
        e("s_lshr_b32 s5, s2, 3")
        c("K lane offset v1 = ((l>>2)&3)*512 + (l>>4)*64 + (l&3)*16 ; V lane offset v2 = (l>>4)*512 + (l&15)*16")
        e("v_bfe_u32 v1, v0, 2, 2")
        e("v_lshlrev_b32 v1, 9, v1")
        e("v_lshrrev_b32 v4, 4, v0")
        e("v_lshl_add_u32 v1, v4, 6, v1")
        e("v_and_b32 v5, 3, v0")
        e("v_lshl_add_u32 v1, v5, 4, v1")
        e("v_and_b32 v5, 15, v0")
        e("v_lshlrev_b32 v2, 4, v5")
        e("v_lshl_add_u32 v2, v4, 9, v2")
        e("s_lshl_b32 s28, s4, 24")
        e("s_lshl_b32 s30, s5, 19")
        e("s_add_u32 s28, s28, s30")
        e("s_lshl_b32 s30, s3, 16")
        e("s_add_u32 s28, s28, s30")
        e("s_cmp_lg_u32 s3, 0")
        e("s_waitcnt lgkmcnt(0)")
        self.srd(8, 34, 0x8000000)
        e("s_cbranch_scc1 L_pref")
        if self.x_noq:
            e("s_branch L_pref")
        c("---- wave 0: partial q for 64 columns x 112 rows of wq, publish, gather the whole q of this head pair ----")
        self.srd(20, 32, 896)
        self.srd(24, 38, 3670016)
        e("v_lshlrev_b32 v6, 4, v0")
        e("v_lshrrev_b32 v7, 3, v0")
        e("v_lshlrev_b32 v3, 13, v7")
        e("v_and_b32 v5, 7, v0")
        e("v_lshl_add_u32 v3, v5, 4, v3")
        e("s_and_b32 s72, s5, 3")
        e("s_lshr_b32 s73, s5, 2")
        e(f"s_mul_i32 s74, s72, {112*8192}")
        e("s_lshl_b32 s30, s4, 10")
        e("s_add_u32 s74, s74, s30")
        e("s_lshl_b32 s30, s73, 7")
        e("s_add_u32 s74, s74, s30")
        e("buffer_load_dwordx4 v[16:19], v6, s[20:23], 0 offen")
        for i in range(14):
            e(f"s_add_u32 s30, s74, {i*65536}")
            e(f"buffer_load_dwordx4 v[{32+4*i}:{35+4*i}], v3, s[24:27], s30 offen{self.wqfl}")
        e("s_load_dword s6, s[54:55], 0")
        for i in range(W00):
            self.stream_load(i)
        self.consts()
        self.stamp(14, "s96")
        e("v_cmp_gt_u32 vcc, 56, v0")
        e("v_mov_b32 v22, 0")
        e("v_mov_b32 v23, 1.0")
        e("v_cndmask_b32 v22, v22, v23, vcc")
        e(f"s_waitcnt vmcnt({14 + W00})")
        f = V(8, 8)
        self.unpack8(f, V(16, 4))
        self.ln_stats(f, "v22", V(88, 6))
        for j in range(8):
            self.ln_apply(f[j], f[j], V(88, 6), "v94", "v95")
        e("s_mov_b32 s30, 0x07060302")
        for j in range(4):
            e(f"v_perm_b32 v{4+j}, v{9+2*j}, v{8+2*j}, s30")
        e("v_lshlrev_b32 v24, 4, v0")
        e(f"v_add_u32 v24, {LDS_XN}, v24")
        e("ds_write_b128 v24, v[4:7]")
        e("s_mul_i32 s30, s72, 224")
        e(f"s_add_u32 s30, s30, {LDS_XN}")
        e("v_lshrrev_b32 v3, 3, v0")
        e("v_lshlrev_b32 v3, 1, v3")
        e("v_add_u32 v3, s30, v3")
        e("s_waitcnt lgkmcnt(0)")
        for i in range(14):
            e(f"ds_read_u16 v{16+i}, v3 offset:{16*i}")
        self.tag()
        for i in range(14):
            e(f"s_waitcnt vmcnt({13 - i + W00}) lgkmcnt({13 - i})")
            e(f"v_lshlrev_b32 v{30+(i&1)}, 16, v{16+i}")
            for d in range(4):
                w = 32 + 4 * i + d
                e(f"v_dot2_f32_bf16 v{8+2*d}, v{w}, v{16+i}, {'0' if i == 0 else 'v%d' % (8+2*d)}")
                e(f"v_dot2_f32_bf16 v{9+2*d}, v{w}, v{30+(i&1)}, {'0' if i == 0 else 'v%d' % (9+2*d)}")
        e("s_nop 2")
        for j in range(8):
            e(f"v_add_f32_dpp v{8+j}, v{8+j}, v{8+j} row_ror:8 row_mask:0xf bank_mask:0xf")
        self.xsum(V(8, 8), V(16, 8))
        for j in range(8):
            e(f"v_add_u32 v{8+j}, 0x80, v{8+j}")
        e("s_mov_b32 s64, 0xff00ff00")
        e("s_mov_b32 s65, 0xff00ff00")
        for j in range(4):
            e(f"v_cndmask_b32 v{8+j}, v{8+j}, v{12+j}, s[64:65]")
        self.pack4(V(32, 4), V(8, 4))
        e("s_lshl_b32 s30, s4, 13")
        e(f"s_add_u32 s75, s30, {WS_QX}")
        e("s_lshl_b32 s30, s72, 11")
        e("s_lshl_b32 s31, s73, 8")
        e("s_add_u32 s30, s30, s31")
        e("s_add_u32 s30, s30, s75")
        e("v_lshlrev_b32 v4, 4, v0")
        e("v_add_u32 v4, s30, v4")
        self.srd(16, 54, WS_SIZE)
        e("s_mov_b64 exec, 0xffff")
        e("buffer_store_dwordx4 v[32:35], v4, s[16:19], 0 offen sc1")
        e("s_mov_b64 exec, -1")
        self.stamp(1)
        self.srd(12, 36, 0x8000000)
        for i in range(W00, self.W01):
            self.stream_load(i)
        e("v_lshlrev_b32 v3, 4, v0")
        e("v_add_u32 v4, s75, v3")
        e("v_add_u32 v5, 4096, v4")
        loads = []
        for b in range(4):
            for i in range(2):
                loads.append((V(40 + 8 * b + 4 * i, 4), "v4" if b < 2 else "v5", (b & 1) * 2048 + i * 1024))
        self.poll(loads, 64, V(72, 8), "v95")
        self.stamp(13)
        for b in range(4):
            for i in range(2):
                for j in range(3):
                    e(f"v_and_b32 v{40+8*b+4*i+j}, 0xffffff00, v{40+8*b+4*i+j}")
        for k in range(8):
            e(f"v_add_f32 v{40+k}, v{40+k}, v{48+k}")
            e(f"v_add_f32 v{56+k}, v{56+k}, v{64+k}")
        for k in range(8):
            e(f"v_add_f32 v{40+k}, v{40+k}, v{56+k}")
        for k in range(4):
            e(f"v_cvt_pk_bf16_f32 v{48+k}, v{40+2*k}, v{41+2*k}")
        e("v_lshrrev_b32 v3, 4, v0")
        e("v_lshlrev_b32 v3, 7, v3")
        e("v_and_b32 v4, 7, v0")
        e("v_lshl_add_u32 v3, v4, 4, v3")
        e("v_bfe_u32 v4, v0, 3, 1")
        e("v_lshl_add_u32 v3, v4, 3, v3")
        e(f"v_add_u32 v3, {LDS_Q}, v3")
        e("ds_write_b64 v3, v[48:49]")
        e("ds_write_b64 v3, v[50:51] offset:512")
        for i in range(self.W01, NS):
            self.stream_load(i)
        e("s_branch L_qready")
        c("---- waves 1..7: paced prefetch of the first K tiles ----")
        e("L_pref:")
        self.cur_so = None
        for i in range(W0):
            self.stream_load(i)
        e("s_load_dword s6, s[54:55], 0")
        self.srd(12, 36, 0x8000000)
        self.srd(16, 54, WS_SIZE)
        self.consts()
        self.stamp(14, "s96")
        for i in range(W0, NS):
            e(f"s_waitcnt vmcnt({W - 1})")
            self.stream_load(i)
        e("s_waitcnt lgkmcnt(0)")
        self.tag()
        e("L_qready:")
        c("PV masks v64..v67: lane j0 = l&7 keeps bf16 slot j0 of the A operand")
        e("v_and_b32 v5, 1, v0")
        e("v_mov_b32 v6, 0xffff")
        e("v_lshlrev_b32 v5, 4, v5")
        e("v_lshlrev_b32 v6, v5, v6")
        e("v_bfe_u32 v7, v0, 1, 2")
        for jj in range(4):
            e(f"v_cmp_eq_u32 vcc, {jj}, v7")
            e("s_nop 1")
            e(f"v_cndmask_b32 v{64+jj}, 0, v6, vcc")
        e("v_mov_b32 v84, 0xff800000")
        e("v_bfe_u32 v3, v0, 3, 1")
        e("v_lshlrev_b32 v3, 9, v3")
        e("v_lshrrev_b32 v4, 4, v0")
        e("v_lshl_add_u32 v3, v4, 6, v3")
        e("v_and_b32 v5, 3, v0")
        e("v_lshl_add_u32 v3, v5, 4, v3")
        e(f"v_add_u32 v3, {LDS_Q}, v3")
        e("s_waitcnt lgkmcnt(0)")
        e("s_barrier")
        self.stamp(2)
        e("ds_read_b128 v[8:11], v3")
        e("ds_read_b128 v[12:15], v3 offset:256")
        c("epilogue addresses: v88 = per-wave O write, v89 = (m,l) write, v90 = O read, v91 = (m,l) read, v92 = partial block")
        e("v_lshrrev_b32 v4, 5, v0")
        e("v_lshlrev_b32 v88, 10, v4")
        e("v_and_b32 v5, 15, v0")
        e("v_lshl_add_u32 v88, v5, 5, v88")
        e("v_bfe_u32 v5, v0, 4, 1")
        e("v_lshl_add_u32 v88, v5, 4, v88")
        e("s_lshl_b32 s30, s3, 11")
        e(f"s_add_u32 s30, s30, {LDS_O}")
        e("v_add_u32 v88, s30, v88")
        e("v_bfe_u32 v5, v0, 3, 1")
        e("v_lshlrev_b32 v89, 6, v5")
        e("s_lshl_b32 s30, s3, 3")
        e(f"s_add_u32 s30, s30, {LDS_ML}")
        e("v_add_u32 v89, s30, v89")
        e("v_lshlrev_b32 v3, 4, v0")
        e("s_lshl_b32 s30, s3, 10")
        e(f"s_add_u32 s30, s30, {LDS_O}")
        e("v_add_u32 v90, s30, v3")
        e("s_lshl_b32 s30, s3, 6")
        e(f"s_add_u32 s30, s30, {LDS_ML}")
        e("v_mov_b32 v91, s30")
        e("s_lshl_b32 s30, s4, 1")
        e("s_add_u32 s30, s30, s3")
        e("s_lshl_b32 s30, s30, 5")
        e("s_add_u32 s30, s30, s5")
        e(f"s_mul_i32 s30, s30, {PO_BLK}")
        e(f"s_add_u32 s30, s30, {WS_PO}")
        e("v_add_u32 v92, s30, v3")
        c("roles (s68: 0 none, 1 = output projection, 2 = FFN; s69 = index): ids with g in {4,6} / g in {0,2}")
        lab = self.label("Lrole")
        e("s_mov_b32 s68, 0")
        e("s_mov_b32 s69, 0")
        e("s_and_b32 s30, s4, 1")
        e("s_cmp_lg_u32 s30, 0")
        e(f"s_cbranch_scc1 {lab}")
        e("s_lshr_b32 s30, s4, 1")
        e("s_cmp_ge_u32 s30, 2")
        e(f"s_cbranch_scc1 {lab}a")
        e("s_cmp_ge_u32 s5, 28")
        e(f"s_cbranch_scc1 {lab}")
        e("s_mov_b32 s68, 2")
        e("s_mul_i32 s69, s30, 28")
        e("s_add_u32 s69, s69, s5")
        e(f"s_branch {lab}")
        e(f"{lab}a:")
        e("s_mov_b32 s68, 1")
        e("s_sub_u32 s69, s30, 2")
        e("s_lshl_b32 s69, s69, 5")
        e("s_add_u32 s69, s69, s5")
        e(f"{lab}:")
        e("s_waitcnt lgkmcnt(0)")

        c("================= K phase: scores of 4 keys x 2 heads per pair of MFMAs =================")
        issued = NS

        def post_k(n):
            d = 16 + (n % 4) * 4
            t = 32 + n
            e(f"v_mov_b32_dpp v{t}, v{d} quad_perm:[0,0,0,0] row_mask:0xf bank_mask:0xf")
            e(f"v_add_f32_dpp v{t}, v{d+1}, v{t} quad_perm:[1,1,1,1] row_mask:0xf bank_mask:0xf")
            e(f"v_add_f32_dpp v{t}, v{d+2}, v{t} quad_perm:[2,2,2,2] row_mask:0xf bank_mask:0xf")
            e(f"v_add_f32_dpp v{t}, v{d+3}, v{t} quad_perm:[3,3,3,3] row_mask:0xf bank_mask:0xf")
            e(f"v_max_f32 v84, v84, v{t}")

        for n in range(32):
            i = 2 * n
            e(f"s_waitcnt vmcnt({issued - i - 2})")
            d = 16 + (n % 4) * 4
            e(f"v_mfma_f32_16x16x32_bf16 v[{d}:{d+3}], {self.slot(i)}, v[8:11], 0")
            e(f"v_mfma_f32_16x16x32_bf16 v[{d}:{d+3}], {self.slot(i+1)}, v[12:15], v[{d}:{d+3}]")
            for k in range(2):
                if issued < 128:
                    self.stream_load(issued)
                    issued += 1
            if n >= 2:
                post_k(n - 2)
        e("s_nop 7")
        post_k(30)
        post_k(31)
        self.stamp(3)
        c("softmax over this wave's 128 keys (scores rounded to bf16 first, true max of the wave subtracted)")
        self.xsum(["v84"], ["v85"], op="v_max_f32")
        self.rne("v84", "v84")
        e("v_mov_b32 v86, 0")
        e("v_mov_b32 v87, 0")
        for m in range(16):
            a, b = 32 + 2 * m, 33 + 2 * m
            e(f"v_cvt_pk_bf16_f32 v85, v{a}, v{b}")
            e(f"v_lshlrev_b32 v{a}, 16, v85")
            e(f"v_and_b32 v{b}, 0xffff0000, v85")
            e(f"v_sub_f32 v{a}, v{a}, v84")
            e(f"v_sub_f32 v{b}, v{b}, v84")
            e(f"v_mul_f32 v{a}, s63, v{a}")
            e(f"v_mul_f32 v{b}, s63, v{b}")
            e(f"v_exp_f32 v{a}, v{a}")
            e(f"v_exp_f32 v{b}, v{b}")
            e("s_nop 0")
            e(f"v_add_f32 v86, v86, v{a}")
            e(f"v_add_f32 v87, v87, v{b}")
        e("v_add_f32 v86, v86, v87")
        self.xsum(["v86"], ["v85"])
        e("v_mov_b32 v94, v84")
        e("v_mov_b32 v95, v86")
        e("s_mov_b64 exec, 0x101")
        e("ds_write_b64 v89, v[94:95]")
        e("s_mov_b64 exec, -1")

        c("================= V phase =================")

        def build_a(n):
            a = 68 + (n % 2) * 4
            e(f"v_cvt_pk_bf16_f32 v85, v{32+n}, v{32+n}")
            for jj in range(4):
                e(f"v_and_b32 v{a+jj}, v85, v{64+jj}")

        build_a(0)
        for n in range(32):
            i = 64 + 2 * n
            if n + 1 < 32:
                build_a(n + 1)
            e(f"s_waitcnt vmcnt({issued - i - 2})")
            a = 68 + (n % 2) * 4
            c0 = "0" if n == 0 else "v[76:79]"
            c1 = "0" if n == 0 else "v[80:83]"
            e(f"v_mfma_f32_16x16x32_bf16 v[76:79], v[{a}:{a+3}], {self.slot(i)}, {c0}")
            e(f"v_mfma_f32_16x16x32_bf16 v[80:83], v[{a}:{a+3}], {self.slot(i+1)}, {c1}")
            for k in range(2):
                if issued < 128:
                    self.stream_load(issued)
                    issued += 1
        self.stamp(4)
        e("s_nop 7")
        e("ds_write_b128 v88, v[76:79]")
        e("ds_write_b128 v88, v[80:83] offset:512")
        e("s_waitcnt lgkmcnt(0)")
        e("s_barrier")
        c("---- waves 0,1: merge the 8 waves of head 2g+w and publish the partial ----")
        e("s_cmp_gt_u32 s3, 1")
        e("s_cbranch_scc1 L_pub_done")
        for k in range(4):
            e(f"ds_read_b128 v[{16+4*k}:{19+4*k}], v91 offset:{16*k}")
        for wv in range(8):
            e(f"ds_read_b128 v[{32+4*wv}:{35+4*wv}], v90 offset:{2048*wv}")
        e("v_mov_b32 v10, 0")
        e("s_waitcnt lgkmcnt(8)")
        e("v_max3_f32 v8, v16, v18, v20")
        e("v_max3_f32 v9, v22, v24, v26")
        e("v_max3_f32 v8, v8, v28, v30")
        e("v_max_f32 v8, v8, v9")
        for wv in range(8):
            e(f"v_sub_f32 v{16+2*wv}, v{16+2*wv}, v8")
        for wv in range(8):
            e(f"v_mul_f32 v{16+2*wv}, s63, v{16+2*wv}")
        for wv in range(8):
            e(f"v_exp_f32 v{16+2*wv}, v{16+2*wv}")
        e("s_nop 0")
        e("v_mul_f32 v9, v16, v17")
        for wv in range(1, 8):
            e(f"v_fma_f32 v9, v{16+2*wv}, v{17+2*wv}, v9")
        self.pack4(V(68, 4), ["v9", "v10", "v10", "v8"])
        e("s_waitcnt lgkmcnt(0)")
        for j in (0, 2):
            e(f"v_pk_mul_f32 v[{12+j}:{13+j}], v[16:17], v[{32+j}:{33+j}] op_sel_hi:[0,1]")
        for wv in range(1, 8):
            for j in (0, 2):
                e(f"v_pk_fma_f32 v[{12+j}:{13+j}], v[{16+2*wv}:{17+2*wv}], v[{32+4*wv+j}:{33+4*wv+j}], v[{12+j}:{13+j}] op_sel_hi:[0,1,1]")
        self.pack4(V(64, 4), V(12, 4))
        e("buffer_store_dwordx4 v[64:67], v92, s[16:19], 0 offen sc1")
        e("s_mov_b64 exec, 1")
        e("buffer_store_dwordx4 v[68:71], v92, s[16:19], 0 offen offset:1024 sc1")
        e("s_mov_b64 exec, -1")
        e("L_pub_done:")
        self.stamp(5)
        e("s_cmp_eq_u32 s68, 0")
        e("s_cbranch_scc1 L_end")
        if self.x_norole:
            e("s_branch L_end")
        self.role_dma()
        e("s_cmp_eq_u32 s68, 2")
        e("s_cbranch_scc1 L_s3")
        self.s2()
        e("s_branch L_end")
        e("L_s3:")
        self.s3()
        e("L_end:")
        self.stamp_flush()
        e("L_exit:")
        e("s_endpgm")

    def role_dma(self):
        e = self.e
        done = self.label("Ldma_done")
        s3l = self.label("Ldma_s3")
        e("s_lshl_b32 s30, s3, 6")
        e("v_add_u32 v10, s30, v0")
        e("s_lshl_b32 s71, s3, 10")
        e("s_cmp_eq_u32 s68, 2")
        e(f"s_cbranch_scc1 {s3l}")
        self.c("wo rows h*256.., 112 columns: piece i = t*512 + tid, row = i/14")
        self.srd(20, 40, 3670016)
        e("s_lshr_b32 s30, s69, 2")
        e(f"s_mul_i32 s30, s30, {256 * 896}")
        e("s_and_b32 s31, s69, 3")
        e("s_mul_i32 s31, s31, 224")
        e("s_add_u32 s70, s30, s31")
        e("s_movk_i32 s31, 18725")
        for t in range(7):
            e(f"v_add_u32 v11, {t*512}, v10")
            e("v_mul_lo_u32 v12, v11, s31")
            e("v_lshrrev_b32 v12, 18, v12")
            e("v_mul_u32_u24 v13, 14, v12")
            e("v_sub_u32 v13, v11, v13")
            e("v_mul_u32_u24 v12, 0x380, v12")
            e("v_lshl_add_u32 v12, v13, 4, v12")
            e(f"s_add_u32 m0, s71, {LDS_W + t*8192}")
            e("s_nop 0")
            e("buffer_load_dwordx4 v12, s[20:23], s70 offen nt lds")
        e(f"s_branch {done}")
        e(f"{s3l}:")
        self.c("32 columns of w_gate and w_up (448 rows x 64 B each), 32 rows of w_down")
        e("v_lshrrev_b32 v11, 2, v10")
        e("v_mul_u32_u24 v11, 0xe00, v11")
        e("v_and_b32 v12, 3, v10")
        e("v_lshl_add_u32 v11, v12, 4, v11")
        e("s_lshl_b32 s70, s69, 6")
        for mtx, p in ((0, 44), (1, 46)):
            self.srd(20, p, 1605632)
            for t in range(4):
                lab = None
                if t == 3:
                    lab = self.label("Lskip")
                    e("s_cmp_gt_u32 s3, 3")
                    e(f"s_cbranch_scc1 {lab}")
                e(f"s_add_u32 s30, s70, {t*128*3584}")
                e(f"s_add_u32 m0, s71, {LDS_W + mtx*28672 + t*8192}")
                e("s_nop 0")
                e("buffer_load_dwordx4 v11, s[20:23], s30 offen nt lds")
                if lab:
                    e(f"{lab}:")
        self.srd(20, 48, 1605632)
        e("v_lshlrev_b32 v11, 4, v10")
        e("s_mul_i32 s70, s69, 28672")
        for t in range(4):
            lab = None
            if t == 3:
                lab = self.label("Lskip")
                e("s_cmp_gt_u32 s3, 3")
                e(f"s_cbranch_scc1 {lab}")
            e(f"s_add_u32 s30, s70, {t*8192}")
            e(f"s_add_u32 m0, s71, {LDS_W + 57344 + t*8192}")
            e("s_nop 0")
            e("buffer_load_dwordx4 v11, s[20:23], s30 offen nt lds")
            if lab:
                e(f"{lab}:")
        e(f"{done}:")

    def s2(self):
        e = self.e
        e("s_lshr_b32 s72, s69, 2")
        e(f"s_mul_i32 s30, s72, {32 * PO_BLK}")
        e(f"s_add_u32 s30, s30, {WS_PO}")
        e("v_and_b32 v7, 31, v0")
        e(f"v_mul_u32_u24 v7, {PO_BLK}, v7")
        e("v_add_u32 v7, s30, v7")
        e(f"s_mul_i32 s31, s3, {4 * PO_BLK}")
        e("s_add_u32 s30, s30, s31")
        e("v_lshlrev_b32 v5, 4, v0")
        e("v_add_u32 v6, s30, v5")
        e(f"v_add_u32 v9, {2 * PO_BLK}, v6")
        self.c("weight operand address: LDS_W + (32s + 8g + r)*224 + w*32 + (l&3)*8")
        e("v_bfe_u32 v3, v0, 2, 2")
        e("v_lshrrev_b32 v4, 4, v0")
        e("v_lshl_add_u32 v3, v4, 3, v3")
        e("v_mul_u32_u24 v3, 224, v3")
        e("v_and_b32 v11, 3, v0")
        e("v_lshl_add_u32 v3, v11, 3, v3")
        e("s_lshl_b32 s30, s3, 5")
        e(f"s_add_u32 s30, s30, {LDS_W}")
        e("v_add_u32 v3, s30, v3")
        e("s_lshl_b32 s30, s3, 10")
        e(f"s_add_u32 s31, s30, {LDS_O}")
        e("v_add_u32 v72, s31, v5")
        self.c("partial read: lane l takes granule 8*((l&15)>>1) + 2*(l>>4) + (l&1)")
        e("v_bfe_u32 v73, v0, 1, 3")
        e("v_lshlrev_b32 v73, 7, v73")
        e("v_lshl_add_u32 v73, v4, 5, v73")
        e("v_and_b32 v11, 1, v0")
        e("v_lshl_add_u32 v73, v11, 4, v73")
        e(f"v_add_u32 v73, {LDS_O}, v73")
        e("s_and_b32 s30, s69, 3")
        e("s_mul_i32 s30, s30, 448")
        e("s_lshl_b32 s31, s3, 6")
        e("s_add_u32 s30, s30, s31")
        e(f"s_mul_i32 s31, s72, {ROW}")
        e("s_add_u32 s30, s30, s31")
        e(f"s_add_u32 s30, s30, {WS_Y}")
        e("v_lshlrev_b32 v77, 2, v0")
        e("v_add_u32 v77, s30, v77")
        self.pack_dw_consts("v78", "v79", 66)
        e("s_lshl_b32 s70, s3, 2")
        e("s_add_u32 s71, s70, 1")
        e("s_add_u32 s73, s70, 2")
        e("s_add_u32 s78, s70, 3")
        e("s_waitcnt vmcnt(0)")
        e("s_barrier")
        e("s_cmp_gt_u32 s3, 6")
        e("s_cbranch_scc1 L_s2_now")
        for s in range(8):
            e(f"ds_read_b64_tr_b16 a[{4*s}:{4*s+1}], v3 offset:{s*7168}")
            e(f"ds_read_b64_tr_b16 a[{4*s+2}:{4*s+3}], v3 offset:{s*7168 + 896}")
        e("L_s2_now:")
        self.stamp(12)
        self.poll([(V(48, 4), "v7", 1024), (V(32, 4), "v6", 0), (V(36, 4), "v6", PO_BLK), (V(40, 4), "v9", 0),
                   (V(44, 4), "v9", PO_BLK)], 32, V(52, 5), "v95", unpack=False, backoff=self.bo2)
        self.stamp(15, "s7")
        self.stamp(6)
        self.unpack4(V(48, 4))
        e("v_mov_b32 v9, v51")
        self.unpack4(V(32, 4))
        e("v_max_f32_dpp v9, v9, v9 quad_perm:[1,0,3,2] row_mask:0xf bank_mask:0xf")
        self.unpack4(V(36, 4))
        e("v_max_f32_dpp v9, v9, v9 quad_perm:[2,3,0,1] row_mask:0xf bank_mask:0xf")
        self.unpack4(V(40, 4))
        e("v_max_f32_dpp v9, v9, v9 row_half_mirror row_mask:0xf bank_mask:0xf")
        self.unpack4(V(44, 4))
        e("v_max_f32_dpp v9, v9, v9 row_mirror row_mask:0xf bank_mask:0xf")
        e("s_nop 0")
        e("v_mov_b32 v10, v9")
        e("s_nop 1")
        e("v_permlane16_swap_b32 v9, v10")
        e("s_nop 1")
        e("v_max_f32 v9, v9, v10")
        e("v_sub_f32 v10, v51, v9")
        e("v_mul_f32 v10, s63, v10")
        e("v_exp_f32 v10, v10")
        e("s_nop 0")
        e("v_mul_f32 v11, v10, v48")
        e("v_readlane_b32 s74, v10, s70")
        e("v_readlane_b32 s75, v10, s71")
        e("v_readlane_b32 s76, v10, s73")
        e("v_readlane_b32 s77, v10, s78")
        e("v_add_f32_dpp v11, v11, v11 quad_perm:[1,0,3,2] row_mask:0xf bank_mask:0xf")
        for j in (0, 2):
            e(f"v_pk_mul_f32 v[{12+j}:{13+j}], s[74:75], v[{32+j}:{33+j}] op_sel_hi:[0,1]")
        for k in range(1, 4):
            sp = (74 + k) & ~1
            hi = (74 + k) & 1
            for j in (0, 2):
                e(f"v_pk_fma_f32 v[{12+j}:{13+j}], s[{sp}:{sp+1}], v[{32+4*k+j}:{33+4*k+j}], v[{12+j}:{13+j}] op_sel:[{hi},0,0] op_sel_hi:[{hi},1,1]")
        e("ds_write_b128 v72, v[12:15]")
        e("v_add_f32_dpp v11, v11, v11 quad_perm:[2,3,0,1] row_mask:0xf bank_mask:0xf")
        e("s_waitcnt lgkmcnt(0)")
        e("s_barrier")
        e("s_cmp_gt_u32 s3, 6")
        e("s_cbranch_scc1 L_end")
        for wv in range(8):
            e(f"ds_read_b128 v[{32+4*wv}:{35+4*wv}], v73 offset:{1024*wv}")
        e("v_add_f32_dpp v11, v11, v11 row_half_mirror row_mask:0xf bank_mask:0xf")
        e("s_nop 1")
        e("v_add_f32_dpp v11, v11, v11 row_mirror row_mask:0xf bank_mask:0xf")
        e("s_nop 0")
        e("v_mov_b32 v10, v11")
        e("s_nop 1")
        e("v_permlane16_swap_b32 v11, v10")
        e("s_nop 1")
        e("v_add_f32 v11, v11, v10")
        e("v_rcp_f32 v10, v11")
        for pair in range(4):
            e(f"s_waitcnt lgkmcnt({6 - 2*pair})")
            for j in (0, 2):
                e(f"v_pk_add_f32 v[{32+8*pair+j}:{33+8*pair+j}], v[{32+8*pair+j}:{33+8*pair+j}], v[{36+8*pair+j}:{37+8*pair+j}]")
        for j in (0, 2):
            e(f"v_pk_add_f32 v[{32+j}:{33+j}], v[{32+j}:{33+j}], v[{40+j}:{41+j}]")
            e(f"v_pk_add_f32 v[{48+j}:{49+j}], v[{48+j}:{49+j}], v[{56+j}:{57+j}]")
        e("v_fma_f32 v9, -v10, v11, 1.0")
        e("v_fma_f32 v10, v9, v10, v10")
        for j in (0, 2):
            e(f"v_pk_add_f32 v[{32+j}:{33+j}], v[{32+j}:{33+j}], v[{48+j}:{49+j}]")
        for j in (0, 2):
            e(f"v_pk_mul_f32 v[{32+j}:{33+j}], v[10:11], v[{32+j}:{33+j}] op_sel_hi:[0,1]")
        e("v_cvt_pk_bf16_f32 v12, v32, v33")
        e("v_cvt_pk_bf16_f32 v13, v34, v35")
        e("s_nop 1")

        def amov(s):
            b = 40 + 4 * (s % 2)
            e(f"v_mov_b32_dpp v{b}, v12 row_newbcast:{2*s} row_mask:0xf bank_mask:0xf")
            e(f"v_mov_b32_dpp v{b+1}, v13 row_newbcast:{2*s} row_mask:0xf bank_mask:0xf")
            e(f"v_mov_b32_dpp v{b+2}, v12 row_newbcast:{2*s+1} row_mask:0xf bank_mask:0xf")
            e(f"v_mov_b32_dpp v{b+3}, v13 row_newbcast:{2*s+1} row_mask:0xf bank_mask:0xf")

        amov(0)
        for s in range(8):
            if s < 7:
                amov(s + 1)
            else:
                e("s_nop 0")
            b = 40 + 4 * (s % 2)
            cc = "0" if s == 0 else "v[16:19]"
            e(f"v_mfma_f32_16x16x32_bf16 v[16:19], v[{b}:{b+3}], a[{4*s}:{4*s+3}], {cc}")
        e("s_nop 7")
        self.pack_dw("v24", "v16", "v25", "v78", "v79", "s[66:67]")
        e("s_mov_b64 exec, 0xffff")
        e("buffer_store_dword v24, v77, s[16:19], 0 offen sc1")
        e("s_mov_b64 exec, -1")
        self.stamp(7)

    def s3(self):
        e = self.e
        self.c("lane (gl = l&15, row = l>>4) ends up owning column 64w + 4gl + row of h1")
        self.srd(24, 32, 896)
        e("v_and_b32 v9, 15, v0")
        e("v_lshrrev_b32 v4, 4, v0")
        e("v_lshl_add_u32 v5, v9, 2, v4")
        e("s_lshl_b32 s30, s3, 6")
        e("v_add_lshl_u32 v5, v5, s30, 1")
        e("buffer_load_ushort v80, v5, s[24:27], 0 offen")
        e(f"v_add_u32 v86, {LDS_H}, v5")
        e(f"v_mul_u32_u24 v8, {4*ROW}, v4")
        e("v_lshl_add_u32 v8, v9, 4, v8")
        e("s_lshl_b32 s30, s3, 8")
        e(f"s_add_u32 s30, s30, {WS_Y}")
        e("v_add_u32 v8, s30, v8")
        e(f"v_add_u32 v10, {2*ROW}, v8")
        self.c("gate/up operand address: LDS_W + m*28672 + (32s + 8g + r)*64 + ct*32 + (l&3)*8")
        e("v_bfe_u32 v3, v0, 2, 2")
        e("v_lshl_add_u32 v3, v4, 3, v3")
        e("v_lshlrev_b32 v6, 6, v3")
        e("v_and_b32 v11, 3, v0")
        e("v_lshl_add_u32 v6, v11, 3, v6")
        e("s_and_b32 s30, s3, 1")
        e("s_mul_i32 s30, s30, 28672")
        e("s_bfe_u32 s31, s3, 0x10001")
        e("s_lshl_b32 s31, s31, 5")
        e("s_add_u32 s30, s30, s31")
        e("s_lshr_b32 s31, s3, 2")
        e(f"s_mul_i32 s31, s31, {7 * 2048}")
        e("s_add_u32 s30, s30, s31")
        e(f"s_add_u32 s30, s30, {LDS_W}")
        e("v_add_u32 v6, s30, v6")
        e("v_mul_u32_u24 v7, 0x380, v3")
        e("v_lshl_add_u32 v7, v11, 3, v7")
        e("s_lshl_b32 s30, s3, 7")
        e(f"s_add_u32 s30, s30, {LDS_W + 57344}")
        e("v_add_u32 v7, s30, v7")
        e("s_lshr_b32 s30, s3, 2")
        e("s_lshl_b32 s30, s30, 8")
        e("s_and_b32 s31, s3, 1")
        e("s_lshl_b32 s31, s31, 7")
        e("s_add_u32 s30, s30, s31")
        e("s_bfe_u32 s31, s3, 0x10001")
        e("s_lshl_b32 s31, s31, 6")
        e("s_add_u32 s30, s30, s31")
        e(f"s_add_u32 s30, s30, {LDS_GU}")
        e("v_lshl_add_u32 v88, v9, 2, s30")
        e("s_lshr_b32 s30, s3, 2")
        e("s_mul_i32 s30, s30, 448")
        e(f"s_add_u32 s30, s30, {LDS_H}")
        e("v_lshl_add_u32 v89, v4, 4, s30")
        self.c("activation lane map: f = 8*(l>>4) + (l&7)")
        e("v_and_b32 v11, 7, v0")
        e("v_lshl_add_u32 v90, v4, 3, v11")
        e("v_lshlrev_b32 v90, 2, v90")
        e(f"v_add_u32 v90, {LDS_GU}, v90")
        e("v_and_b32 v11, 1, v0")
        e("v_mov_b32 v91, 0x01000504")
        e("v_mov_b32 v92, 0x05040100")
        e("v_cmp_eq_u32 vcc, 1, v11")
        e(f"s_mul_i32 s30, s69, {ROW}")
        e("s_lshl_b32 s31, s3, 8")
        e("v_cndmask_b32 v91, v91, v92, vcc")
        e("s_add_u32 s30, s30, s31")
        e(f"s_add_u32 s30, s30, {WS_Z}")
        e("v_lshl_add_u32 v93, v0, 2, s30")
        self.pack_dw_consts("v60", "v61", 46)
        e("s_lshl_b32 s30, s3, 3")
        e(f"s_add_u32 s30, s30, {LDS_ST}")
        e("v_lshl_add_u32 v63, v4, 2, s30")
        e("v_mov_b32 v40, 0")
        e("s_mov_b32 s48, 0x00010001")
        e("s_mov_b32 s49, 0")
        e("s_mov_b64 exec, s[48:49]")
        e("ds_write_b32 v63, v40")
        e("s_mov_b64 exec, -1")
        self.c("stage-4 gather address: Z + (8i + (l>>3))*ROW + (j3>>2)*128 + (l&7)*16")
        e("v_lshrrev_b32 v62, 3, v0")
        e(f"v_mul_u32_u24 v62, {ROW}, v62")
        e("v_and_b32 v12, 7, v0")
        e("v_lshl_add_u32 v62, v12, 4, v62")
        e("s_lshr_b32 s30, s69, 2")
        e("s_lshl_b32 s30, s30, 7")
        e(f"s_add_u32 s30, s30, {WS_Z}")
        e("v_add_u32 v62, s30, v62")
        e("s_mov_b32 s40, 0xffff0000")
        e("s_mov_b32 s41, 0")
        e("s_mov_b32 s42, 0")
        e("s_mov_b32 s43, 0x0000ffff")
        e("s_mov_b32 s44, 0")
        e("s_mov_b32 s45, 0xffff0000")
        e("v_mov_b32 v81, 0x3d372713")
        e("s_waitcnt vmcnt(0)")
        e("s_barrier")
        for s in range(7):
            e(f"ds_read_b64_tr_b16 a[{4*s}:{4*s+1}], v6 offset:{s*2048}")
            e(f"ds_read_b64_tr_b16 a[{4*s+2}:{4*s+3}], v6 offset:{s*2048 + 256}")
        e("s_cmp_gt_u32 s3, 6")
        e("s_cbranch_scc1 L_s3_notr")
        for t in range(4):
            e(f"ds_read_b64_tr_b16 a[{32+4*t}:{33+4*t}], v7 offset:{t*32}")
            e(f"ds_read_b64_tr_b16 a[{34+4*t}:{35+4*t}], v7 offset:{t*32 + 3584}")
        e("L_s3_notr:")
        self.c("column sums of this wave's gate/up tile over its half of K (vector of ones)")
        for j in range(4):
            e(f"v_mov_b32 v{20+j}, 0x3f803f80")
        e("v_lshlrev_b32 v80, 16, v80")
        e("s_waitcnt lgkmcnt(0)")
        for s in range(7):
            cc = "0" if s == 0 else "v[16:19]"
            e(f"v_mfma_f32_16x16x32_bf16 v[16:19], v[20:23], a[{4*s}:{4*s+3}], {cc}")
        e("s_nop 7")
        e("s_mov_b64 exec, 0xffff")
        e("ds_write_b32 v88, v16 offset:512")
        e("s_mov_b64 exec, -1")
        e("s_waitcnt lgkmcnt(0)")
        e("s_barrier")
        e("ds_read_b32 v16, v90 offset:512")
        e("ds_read_b32 v17, v90 offset:768")
        e("ds_read_b32 v18, v90 offset:640")
        e("ds_read_b32 v19, v90 offset:896")
        e("s_waitcnt lgkmcnt(0)")
        e("v_add_f32 v94, v16, v17")
        e("v_add_f32 v84, v18, v19")
        e("s_cmp_gt_u32 s3, 6")
        e("s_cbranch_scc1 L_s3_nogather")
        self.stamp(12)
        self.poll([(V(32, 4), "v8", 0), (V(36, 4), "v8", ROW), (V(40, 4), "v10", 0), (V(44, 4), "v10", ROW)],
                  32, V(48, 4), "v12", backoff=self.bo3)
        self.stamp(15, "s7")
        self.stamp(6)
        for j in (0, 2):
            e(f"v_pk_add_f32 v[{32+j}:{33+j}], v[{32+j}:{33+j}], v[{36+j}:{37+j}]")
            e(f"v_pk_add_f32 v[{40+j}:{41+j}], v[{40+j}:{41+j}], v[{44+j}:{45+j}]")
        for j in (0, 2):
            e(f"v_pk_add_f32 v[{32+j}:{33+j}], v[{32+j}:{33+j}], v[{40+j}:{41+j}]")
        self.rowscatter4(V(32, 4))
        self.rne("v32", "v32")
        e("v_add_f32 v32, v32, v80")
        e("v_cvt_pk_bf16_f32 v36, v32, v32")
        e("ds_write_b16 v86, v36")
        e("v_lshlrev_b32 v40, 16, v36")
        e("v_mul_f32 v41, v40, v40")
        e("s_nop 0")
        for st in ("quad_perm:[1,0,3,2]", "quad_perm:[2,3,0,1]", "row_half_mirror", "row_mirror"):
            e(f"v_add_f32_dpp v40, v40, v40 {st} row_mask:0xf bank_mask:0xf")
            e(f"v_add_f32_dpp v41, v41, v41 {st} row_mask:0xf bank_mask:0xf")
            e("s_nop 0")
        e("s_nop 0")
        e("v_permlane16_swap_b32 v40, v41")
        e("s_nop 0")
        e("v_add_f32 v40, v40, v41")
        e("v_mov_b32 v41, v40")
        e("s_nop 1")
        e("v_permlane32_swap_b32 v40, v41")
        e("s_nop 0")
        e("v_add_f32 v40, v40, v41")
        e("s_mov_b64 exec, s[48:49]")
        e("ds_write_b32 v63, v40")
        e("s_mov_b64 exec, -1")
        e("L_s3_nogather:")
        e("s_waitcnt lgkmcnt(0)")
        e("s_barrier")
        regs = [64, 68, 72, 76, 48, 52, 56]
        for s in range(7):
            e(f"ds_read_b128 v[{regs[s]}:{regs[s]+3}], v89 offset:{64*s}")
        e(f"v_mov_b32 v8, {LDS_ST}")
        for k in range(4):
            e(f"ds_read_b128 v[{24+4*k}:{27+4*k}], v8 offset:{16*k}")
        for s in range(7):
            e(f"s_waitcnt lgkmcnt({10-s})")
            cc = "0" if s == 0 else "v[16:19]"
            e(f"v_mfma_f32_16x16x32_bf16 v[16:19], v[{regs[s]}:{regs[s]+3}], a[{4*s}:{4*s+3}], {cc}")
        e("s_waitcnt lgkmcnt(0)")
        for k in range(4):
            e(f"v_pk_add_f32 v[{24+4*k}:{25+4*k}], v[{24+4*k}:{25+4*k}], v[{26+4*k}:{27+4*k}]")
        e("v_pk_add_f32 v[24:25], v[24:25], v[28:29]")
        e("v_pk_add_f32 v[32:33], v[32:33], v[36:37]")
        e("v_pk_add_f32 v[24:25], v[24:25], v[32:33]")
        e(f"v_mul_f32 v44, 0x{F_INV448:08x}, v24")
        e(f"v_mul_f32 v42, 0x{F_INV448:08x}, v25")
        e("s_mov_b64 exec, 0xffff")
        e("ds_write_b32 v88, v16")
        e("s_mov_b64 exec, -1")
        e("v_fma_f32 v42, -v44, v44, v42")
        e("v_max_f32 v42, 0, v42")
        e("v_cvt_pk_bf16_f32 v40, v44, v42")
        e("v_and_b32 v42, 0xffff0000, v40")
        e("v_lshlrev_b32 v40, 16, v40")
        e(f"v_add_f32 v42, 0x{F_EPS:08x}, v42")
        self.rne("v42", "v42")
        e("v_sqrt_f32 v41, v42")
        e("s_nop 0")
        self.rne("v41", "v41")
        e("v_rcp_f32 v42, v41")
        e("s_waitcnt lgkmcnt(0)")
        e("s_barrier")
        e("s_cmp_gt_u32 s3, 6")
        e("s_cbranch_scc1 L_s3_w7")
        e("ds_read_b32 v16, v90")
        e("ds_read_b32 v17, v90 offset:256")
        e("ds_read_b32 v18, v90 offset:128")
        e("ds_read_b32 v19, v90 offset:384")
        e("s_waitcnt lgkmcnt(2)")
        e("v_add_f32 v16, v16, v17")
        e("v_fma_f32 v16, -v40, v94, v16")
        e("s_waitcnt lgkmcnt(0)")
        e("v_add_f32 v18, v18, v19")
        e("v_fma_f32 v18, -v40, v84, v18")
        e("v_mul_f32 v16, v16, v42")
        e("v_mul_f32 v18, v18, v42")
        e("v_cvt_pk_bf16_f32 v17, v16, v18")
        e("v_lshlrev_b32 v16, 16, v17")
        e("v_and_b32 v18, 0xffff0000, v17")
        e("v_mul_f32 v17, v16, v16")
        e("v_mul_f32 v17, v17, v16")
        e("v_fma_f32 v17, v17, v81, v16")
        e("v_mul_f32 v17, 0xc0135761, v17")
        e("v_min_f32 v17, 0x42fc0000, v17")
        e("v_exp_f32 v17, v17")
        e("s_nop 0")
        e("v_add_f32 v17, 1.0, v17")
        e("v_rcp_f32 v19, v17")
        e("s_nop 0")
        e("v_mul_f32 v20, v16, v19")
        self.rne("v20", "v20")
        e("v_mul_f32 v20, v20, v18")
        e("v_cvt_pk_bf16_f32 v20, v20, v20")
        e("s_nop 1")
        e("v_mov_b32_dpp v21, v20 quad_perm:[1,0,3,2] row_mask:0xf bank_mask:0xf")
        e("v_perm_b32 v20, v20, v21, v91")
        e("s_nop 1")
        for jj in range(4):
            e(f"v_mov_b32_dpp v{16+jj}, v20 row_newbcast:{2*jj} row_mask:0xf bank_mask:0xf")
        e("s_nop 1")
        for t in range(4):
            e(f"v_mfma_f32_16x16x32_bf16 v[{32+4*t}:{35+4*t}], v[16:19], a[{32+4*t}:{35+4*t}], 0")
        e("s_nop 5")
        e("v_cndmask_b32 v32, v32, v36, s[40:41]")
        e("v_cndmask_b32 v32, v32, v40, s[42:43]")
        e("s_nop 0")
        e("v_cndmask_b32 v32, v32, v44, s[44:45]")
        e("s_nop 1")
        self.pack_dw("v24", "v32", "v25", "v60", "v61", "s[46:47]")
        e("buffer_store_dword v24, v93, s[16:19], 0 offen sc1")
        self.stamp(7)
        e("s_waitcnt vmcnt(0)")
        e("s_barrier")
        e("s_branch L_end")
        self.c("---- stage 4: wave 7 of every 4th FFN workgroup sums 56 partial rows for 32 output columns ----")
        e("L_s3_w7:")
        e("s_and_b32 s30, s69, 3")
        e("s_cmp_lg_u32 s30, 0")
        e("s_cbranch_scc1 L_end")
        e("v_and_b32 v12, 7, v0")
        e("v_lshl_add_u32 v5, v12, 2, v4")
        e("s_lshl_b32 s30, s69, 3")
        e("v_add_lshl_u32 v5, v5, s30, 1")
        e(f"v_add_u32 v8, {LDS_H}, v5")
        e("ds_read_u16 v32, v8")
        self.srd(24, 50, 896)
        loads = []
        for i in range(7):
            e(f"v_add_u32 v{16+i}, {i*8*ROW}, v62")
            loads.append((V(64 + 4 * i, 4), f"v{16+i}", 0))
        e("s_mov_b32 s48, 0x00ff00ff")
        e("s_mov_b32 s49, 0x00ff00ff")
        e("s_waitcnt lgkmcnt(0)")
        e("v_lshlrev_b32 v32, 16, v32")
        e("s_barrier")
        self.stamp(10)
        self.poll(loads, 32, V(24, 7), "v95")
        self.stamp(11, "s7")
        self.stamp(8)
        for j in (0, 2):
            e(f"v_pk_add_f32 v[{64+j}:{65+j}], v[{64+j}:{65+j}], v[{68+j}:{69+j}]")
            e(f"v_pk_add_f32 v[{72+j}:{73+j}], v[{72+j}:{73+j}], v[{76+j}:{77+j}]")
            e(f"v_pk_add_f32 v[{80+j}:{81+j}], v[{80+j}:{81+j}], v[{84+j}:{85+j}]")
        for j in (0, 2):
            e(f"v_pk_add_f32 v[{64+j}:{65+j}], v[{64+j}:{65+j}], v[{72+j}:{73+j}]")
            e(f"v_pk_add_f32 v[{80+j}:{81+j}], v[{80+j}:{81+j}], v[{88+j}:{89+j}]")
        for j in (0, 2):
            e(f"v_pk_add_f32 v[{64+j}:{65+j}], v[{64+j}:{65+j}], v[{80+j}:{81+j}]")
        e("s_nop 0")
        for j in range(4):
            e(f"v_add_f32_dpp v{64+j}, v{64+j}, v{64+j} row_ror:8 row_mask:0xf bank_mask:0xf")
        self.rowscatter4(V(64, 4))
        self.rne("v64", "v64")
        e("v_add_f32 v64, v64, v32")
        e("v_cvt_pk_bf16_f32 v68, v64, v64")
        e("s_mov_b64 exec, s[48:49]")
        e("buffer_store_short v68, v5, s[24:27], 0 offen" + self.outfl)
        e("s_cmp_lg_u32 s69, 0")
        e("s_cbranch_scc1 L_s4_done")
        e("v_mov_b32 v8, s6")
        e("v_mov_b32 v9, 0")
        e("s_mov_b64 exec, 1")
        e("buffer_store_dword v8, v9, s[16:19], 0 offen sc1")
        e("L_s4_done:")
        e("s_mov_b64 exec, -1")
        self.stamp(9)

    def text(self):
        self.build()
        src = HDR + f"; @launch grid=(256,1,1) block=(512,1,1) lds={LDS_TOTAL}\n"
        src += '.amdgcn_target "amdgcn-amd-amdhsa--gfx950"\n.text\n'
        src += f".globl {KERN}\n.p2align 8\n.type {KERN},@function\n{KERN}:\n"
        src += "\n".join(self.o) + "\n"
        nacc = self.NS * 4
        src += f""".section .rodata,"a"
.p2align 6
.amdhsa_kernel {KERN}
  .amdhsa_next_free_vgpr {96 + nacc}
  .amdhsa_next_free_sgpr 102
  .amdhsa_accum_offset 96
  .amdhsa_group_segment_fixed_size 0
  .amdhsa_kernarg_size 96
  .amdhsa_user_sgpr_count 2
  .amdhsa_user_sgpr_kernarg_segment_ptr 1
  .amdhsa_system_sgpr_workgroup_id_x 1
.end_amdhsa_kernel
"""
        return src


if __name__ == "__main__":
    import argparse
    ap = argparse.ArgumentParser()
    ap.add_argument("-o", default="k10.s")
    ap.add_argument("--NS", type=int, default=40)
    ap.add_argument("--W0", type=int, default=8)
    ap.add_argument("--W", type=int, default=6)
    ap.add_argument("--stamps", action="store_true")
    ap.add_argument("--light", action="store_true")
    ap.add_argument("--wq_plain", action="store_true")
    ap.add_argument("--outfl", default=" sc1")
    ap.add_argument("--bo2", default="")
    ap.add_argument("--bo3", default="")
    ap.add_argument("--W00", type=int, default=8)
    ap.add_argument("--W01", type=int, default=99)
    ap.add_argument("--x_nodma", action="store_true")
    ap.add_argument("--x_noq", action="store_true")
    ap.add_argument("--x_norole", action="store_true")
    a = ap.parse_args()
    g = Gen(NS=a.NS, W0=a.W0, W=a.W, stamps=a.stamps, light=a.light)
    if a.x_nodma:
        Gen.role_dma = lambda self: None
    g.wqfl = "" if a.wq_plain else " nt"
    g.W00 = a.W00
    g.W01 = a.W01
    g.bo2 = tuple(int(x) for x in a.bo2.split(",")) if a.bo2 else None
    g.bo3 = tuple(int(x) for x in a.bo3.split(",")) if a.bo3 else None
    g.outfl = a.outfl
    g.x_noq = a.x_noq
    g.x_norole = a.x_norole
    open(a.o, "w").write(g.text())
```

```python
NAME = "sequential_preLN__gqa_block_cached__geglu_ffn__decode"
KERN = NAME + "_kernel"
HDR = open("cdna_kernels/%s.s.ref" % NAME).read().split("; Override launch")[0]

WS_QX = 0x1000
WS_PO = 0x20000
PO_BLK = 1152
WS_Y = 0x100000
WS_Z = 0x120000
ROW = 2048
WS_STAMP = 64 << 20
WS_SIZE = 512 << 20

LDS_W = 0
LDS_O = 86016
LDS_ML = LDS_O + 16384
LDS_Q = LDS_ML + 128
LDS_H = LDS_Q + 1024
LDS_XN = LDS_H + 1024
LDS_GU = LDS_XN + 1024
LDS_CS = LDS_GU + 512
LDS_ST = LDS_CS + 512
LDS_TOTAL = LDS_ST + 64

CEXP = 0x3DB8AA3B
F_INV448 = 0x3B124925
F_448 = 0x43E00000
F_EPS = 0x3727C5AC
POLL_MAX = 0x100000


DOC = """; One persistent launch, 256 workgroups x 8 waves, one workgroup per CU.
"""


def V(a, n):
    return [f"v{a+i}" for i in range(n)]


class Gen:
    def __init__(self, NS=40, W0=8, W=6, stamps=False, light=False):
        self.o = []
        self.NS, self.W0, self.W = NS, W0, W
        self.stamps = stamps
        self.light = light
        self.lab = 0
        self.dma_w = 0
        self.outfl = ' sc1'
        self.bo2 = None
        self.bo3 = None
        self.wqfl = ' nt'
        self.W00 = W0
        self.W01 = NS
        self.x_noq = False
        self.x_norole = False

    def e(self, s):
        for line in s.strip("\n").split("\n"):
            line = line.strip()
            if not line:
                continue
            self.o.append(line if line.endswith(":") or line.startswith(";") else "    " + line)

    def c(self, text):
        self.o.append("    ; " + text)

    def label(self, p="L"):
        self.lab += 1
        return f"{p}_{self.lab}"

    def stamp(self, k, src=None):
        if not self.stamps or (self.light and k not in (4, 9, 14)):
            return
        if src is None:
            self.e("s_memrealtime s[98:99]")
            self.e("s_waitcnt lgkmcnt(0)")
            self.e(f"s_mov_b32 s{80+k}, s98")
        else:
            self.e(f"s_mov_b32 s{80+k}, {src}")

    def stamp_flush(self):
        if not self.stamps:
            return
        e = self.e
        e("s_mov_b64 exec, -1")
        for k in range(16):
            e(f"v_mov_b32 v{32+k}, s{80+k}")
        e("s_lshl_b32 s30, s2, 3")
        e("s_add_u32 s30, s30, s3")
        e("s_lshl_b32 s30, s30, 6")
        e(f"s_add_u32 s30, s30, {WS_STAMP}")
        e("v_mov_b32 v3, s30")
        e("s_mov_b64 exec, 1")
        for k in range(4):
            e(f"buffer_store_dwordx4 v[{32+4*k}:{35+4*k}], v3, s[16:19], 0 offen offset:{16*k}")

    def rne(self, dst, src):
        self.e(f"v_cvt_pk_bf16_f32 {dst}, {src}, {src}")
        self.e(f"v_lshlrev_b32 {dst}, 16, {dst}")

    def wave_sum1(self, r):
        self.e("s_nop 1")
        for st in ("row_shr:1 row_mask:0xf bank_mask:0xf bound_ctrl:0", "row_shr:2 row_mask:0xf bank_mask:0xf bound_ctrl:0",
                   "row_shr:4 row_mask:0xf bank_mask:0xf bound_ctrl:0", "row_shr:8 row_mask:0xf bank_mask:0xf bound_ctrl:0",
                   "row_bcast:15 row_mask:0xa bank_mask:0xf", "row_bcast:31 row_mask:0xc bank_mask:0xf"):
            self.e(f"v_add_f32_dpp {r}, {r}, {r} {st}")
            self.e("s_nop 1")

    def pack4(self, w, v):
        self.e(f"v_perm_b32 {w[0]}, {v[0]}, {v[3]}, s58")
        self.e(f"v_perm_b32 {w[1]}, {v[1]}, {v[3]}, s59")
        self.e(f"v_perm_b32 {w[2]}, {v[2]}, {v[3]}, s60")
        self.e(f"v_add3_u32 {w[3]}, {w[0]}, {w[1]}, {w[2]}")
        self.e(f"v_sub_u32 {w[3]}, s6, {w[3]}")

    def pack_dw(self, out, v, tmp, selv, vtag, m3):
        e = self.e
        e(f"v_mov_b32_dpp {tmp}, {v} quad_perm:[3,3,3,3] row_mask:0xf bank_mask:0xf")
        e(f"v_perm_b32 {out}, {v}, {tmp}, {selv}")
        e("s_nop 1")
        e(f"v_add_u32_dpp {tmp}, {out}, {out} quad_perm:[1,0,3,2] row_mask:0xf bank_mask:0xf")
        e("s_nop 1")
        e(f"v_add_u32_dpp {tmp}, {tmp}, {tmp} quad_perm:[2,3,0,1] row_mask:0xf bank_mask:0xf")
        e(f"v_sub_u32 {tmp}, {vtag}, {tmp}")
        e(f"v_cndmask_b32 {out}, {out}, {tmp}, {m3}")

    def pack_dw_consts(self, selv, vtag, m3lo):
        e = self.e
        e(f"s_mov_b32 s{m3lo}, 0x88888888")
        e(f"s_mov_b32 s{m3lo+1}, 0x88888888")
        e(f"v_and_b32 {selv}, 3, v0")
        e(f"v_add_u32 {selv}, 0x07060501, {selv}")
        e(f"v_mov_b32 {vtag}, 0x0c0c0c0c")
        e(f"v_cndmask_b32 {selv}, {selv}, {vtag}, s[{m3lo}:{m3lo+1}]")
        e(f"v_mov_b32 {vtag}, s6")

    def unpack4(self, w):
        self.e(f"v_perm_b32 {w[3]}, {w[1]}, {w[0]}, s61")
        self.e(f"v_perm_b32 {w[3]}, {w[2]}, {w[3]}, s62")

    def poll(self, loads, sbase, temps, acc, unpack=True, backoff=None):
        e = self.e
        n = len(loads)
        lp = self.label("Lpoll")
        dn = self.label("Lpolled")
        sm = [f"s[{sbase+2*k}:{sbase+2*k+1}]" for k in range(n)]
        e("s_mov_b32 s7, 0")
        for regs, va, off in loads:
            r0 = int(regs[0][1:])
            e(f"buffer_load_dwordx4 v[{r0}:{r0+3}], {va}, s[16:19], 0 offen offset:{off} sc1")
        e(f"s_branch {lp}w")
        e(f"{lp}:")
        for k, (regs, va, off) in enumerate(loads):
            sk = self.label("Lsk")
            r0 = int(regs[0][1:])
            e(f"s_cmp_eq_u64 {sm[k]}, 0")
            e(f"s_cbranch_scc1 {sk}")
            e(f"s_mov_b64 exec, {sm[k]}")
            e(f"buffer_load_dwordx4 v[{r0}:{r0+3}], {va}, s[16:19], 0 offen offset:{off} sc1")
            e(f"{sk}:")
        e("s_mov_b64 exec, -1")
        e(f"{lp}w:")
        e("s_waitcnt vmcnt(0)")
        for k, (w, va, off) in enumerate(loads):
            e(f"v_add3_u32 {temps[k]}, {w[0]}, {w[1]}, {w[2]}")
        for k, (w, va, off) in enumerate(loads):
            e(f"v_add3_u32 {temps[k]}, {temps[k]}, {w[3]}, s57")
        rest = list(temps[:n])
        e(f"v_or3_b32 {acc}, {rest[0]}, {rest[1]}, {rest[2]}")
        rest = rest[3:]
        while rest:
            if len(rest) >= 2:
                e(f"v_or3_b32 {acc}, {acc}, {rest[0]}, {rest[1]}")
                rest = rest[2:]
            else:
                e(f"v_or_b32 {acc}, {acc}, {rest[0]}")
                rest = rest[1:]
        e(f"v_cmp_ne_u32 vcc, 0, {acc}")
        e("s_add_u32 s7, s7, 1")
        e(f"s_cbranch_vccz {dn}")
        for k in range(n):
            e(f"v_cmp_ne_u32 {sm[k]}, 0, {temps[k]}")
        if backoff:
            sk = self.label("Lnb")
            e("s_bcnt1_i32_b64 s30, vcc")
            e(f"s_cmp_le_u32 s30, {backoff[0]}")
            e(f"s_cbranch_scc1 {sk}")
            e(f"s_sleep {backoff[1]}")
            e(f"{sk}:")
        e(f"s_cmp_gt_u32 s7, 0x{POLL_MAX:x}")
        e(f"s_cbranch_scc0 {lp}")
        e(f"{dn}:")
        if unpack:
            for regs, va, off in loads:
                self.unpack4(regs)

    def div448(self, dst, src, a, b):
        e = self.e
        e(f"v_mov_b32 {a}, {src}")
        e(f"v_mul_f32 {dst}, 0x{F_INV448:08x}, {a}")
        e(f"v_mov_b32 {b}, 0x{F_448:08x}")
        e(f"v_fma_f32 {a}, -{dst}, {b}, {a}")
        e(f"v_mov_b32 {b}, 0x{F_INV448:08x}")
        e(f"v_fma_f32 {dst}, {a}, {b}, {dst}")

    def ln_stats(self, f, vm, t):
        e = self.e
        e(f"v_add_f32 {t[0]}, {f[0]}, {f[1]}")
        e(f"v_add_f32 {t[1]}, {f[2]}, {f[3]}")
        e(f"v_add_f32 {t[2]}, {f[4]}, {f[5]}")
        e(f"v_add_f32 {t[3]}, {f[6]}, {f[7]}")
        e(f"v_add_f32 {t[0]}, {t[0]}, {t[1]}")
        e(f"v_add_f32 {t[2]}, {t[2]}, {t[3]}")
        e(f"v_add_f32 {t[0]}, {t[0]}, {t[2]}")
        self.wave_sum1(t[0])
        e(f"v_readlane_b32 s30, {t[0]}, 63")
        e("s_nop 1")
        self.div448(t[4], "s30", t[3], t[5])
        e(f"v_sub_f32 {t[0]}, {f[0]}, {t[4]}")
        e(f"v_mul_f32 {t[1]}, {t[0]}, {t[0]}")
        for i in range(1, 8):
            e(f"v_sub_f32 {t[0]}, {f[i]}, {t[4]}")
            e(f"v_fma_f32 {t[1]}, {t[0]}, {t[0]}, {t[1]}")
        e(f"v_mul_f32 {t[1]}, {t[1]}, {vm}")
        self.wave_sum1(t[1])
        e(f"v_readlane_b32 s30, {t[1]}, 63")
        e("s_nop 1")
        self.div448(t[2], "s30", t[3], t[5])
        self.rne(t[0], t[4])
        self.rne(t[2], t[2])
        e(f"v_add_f32 {t[2]}, 0x{F_EPS:08x}, {t[2]}")
        self.rne(t[2], t[2])
        e(f"v_sqrt_f32 {t[1]}, {t[2]}")
        e("s_nop 0")
        self.rne(t[1], t[1])
        e(f"v_rcp_f32 {t[2]}, {t[1]}")
        e("s_nop 0")

    def ln_apply(self, dst, x, t, a, b):
        e = self.e
        e(f"v_sub_f32 {a}, {x}, {t[0]}")
        self.rne(a, a)
        e(f"v_mul_f32 {b}, {a}, {t[2]}")
        e(f"v_fma_f32 {a}, -{b}, {t[1]}, {a}")
        e(f"v_fma_f32 {b}, {a}, {t[2]}, {b}")
        self.rne(dst, b)

    def unpack8(self, f, src):
        for i in range(4):
            self.e(f"v_lshlrev_b32 {f[2*i]}, 16, {src[i]}")
            self.e(f"v_and_b32 {f[2*i+1]}, 0xffff0000, {src[i]}")

    def xsum(self, regs, tmps, op="v_add_f32"):
        e = self.e
        for sw in ("v_permlane16_swap_b32", "v_permlane32_swap_b32"):
            for r, t in zip(regs, tmps):
                e(f"v_mov_b32 {t}, {r}")
            if len(regs) < 3:
                e("s_nop 1")
            for r, t in zip(regs, tmps):
                e(f"{sw} {r}, {t}")
            if len(regs) < 3:
                e("s_nop 1")
            for r, t in zip(regs, tmps):
                e(f"{op} {r}, {r}, {t}")

    def rowscatter4(self, r):
        e = self.e
        e("s_nop 1")
        e(f"v_permlane16_swap_b32 {r[0]}, {r[1]}")
        e(f"v_permlane16_swap_b32 {r[2]}, {r[3]}")
        e("s_nop 0")
        e(f"v_add_f32 {r[0]}, {r[0]}, {r[1]}")
        e(f"v_add_f32 {r[2]}, {r[2]}, {r[3]}")
        e("s_nop 1")
        e(f"v_permlane32_swap_b32 {r[0]}, {r[2]}")
        e("s_nop 0")
        e(f"v_add_f32 {r[0]}, {r[0]}, {r[2]}")

    def tag(self):
        self.e("s_mul_i32 s6, s6, 0x9E3779B1")
        self.e("s_add_u32 s6, s6, 0x7F4A7C15")
        self.e("s_or_b32 s6, s6, 1")
        self.e("s_sub_u32 s57, 0, s6")

    def srd(self, base, p, size):
        e = self.e
        e(f"s_mov_b32 s{base}, s{p}")
        e(f"s_mov_b32 s{base+1}, s{p+1}")
        e(f"s_mov_b32 s{base+2}, 0x{size:x}")
        e(f"s_mov_b32 s{base+3}, 0x20000")

    def consts(self):
        e = self.e
        e("s_mov_b32 s58, 0x07060501")
        e("s_mov_b32 s59, 0x07060502")
        e("s_mov_b32 s60, 0x07060503")
        e("s_mov_b32 s61, 0x0c04000c")
        e("s_mov_b32 s62, 0x04020100")
        e(f"s_mov_b32 s63, 0x{CEXP:08x}")

    def stream_load(self, i):
        n, half = (i % 64) >> 1, i & 1
        off = n * 2048 + half * 256
        hi, lo = off & ~4095, off & 4095
        if self.cur_so != hi:
            self.e(f"s_add_u32 s29, s28, {hi}")
            self.cur_so = hi
        slot = (i % self.NS) * 4
        srd, vo = ("s[8:11]", "v1") if i < 64 else ("s[12:15]", "v2")
        self.e(f"buffer_load_dwordx4 a[{slot}:{slot+3}], {vo}, {srd}, s29 offen offset:{lo} nt")

    def slot(self, i):
        s = (i % self.NS) * 4
        return f"a[{s}:{s+3}]"

    def build(self):
        e, c = self.e, self.c
        NS, W0, W = self.NS, self.W0, self.W
        W00 = self.W00
        self.W01 = min(self.W01, NS)
        self.cur_so = None
        if self.stamps:
            e("s_memrealtime s[96:97]")
            for k in range(16):
                e(f"s_mov_b32 s{80+k}, 0")
        c("workgroup = (kv head g = id&7, key chunk = id>>3); 8 waves, 128 keys each; extra workgroups leave at once")
        e("s_cmp_ge_u32 s2, 256")
        e("s_cbranch_scc1 L_exit")
        e("s_load_dwordx16 s[32:47], s[0:1], 0")
        e("s_load_dwordx8 s[48:55], s[0:1], 64")
        e("v_lshrrev_b32 v3, 6, v0")
        e("v_and_b32 v0, 63, v0")
        e("s_and_b32 s4, s2, 7")
        e("v_readfirstlane_b32 s3, v3")
        e("s_lshr_b32 s5, s2, 3")
        c("K lane offset v1 = ((l>>2)&3)*512 + (l>>4)*64 + (l&3)*16 ; V lane offset v2 = (l>>4)*512 + (l&15)*16")
        e("v_bfe_u32 v1, v0, 2, 2")
        e("v_lshlrev_b32 v1, 9, v1")
        e("v_lshrrev_b32 v4, 4, v0")
        e("v_lshl_add_u32 v1, v4, 6, v1")
        e("v_and_b32 v5, 3, v0")
        e("v_lshl_add_u32 v1, v5, 4, v1")
        e("v_and_b32 v5, 15, v0")
        e("v_lshlrev_b32 v2, 4, v5")
        e("v_lshl_add_u32 v2, v4, 9, v2")
        e("s_lshl_b32 s28, s4, 24")
        e("s_lshl_b32 s30, s5, 19")
        e("s_add_u32 s28, s28, s30")
        e("s_lshl_b32 s30, s3, 16")
        e("s_add_u32 s28, s28, s30")
        e("s_cmp_lg_u32 s3, 0")
        e("s_waitcnt lgkmcnt(0)")
        self.srd(8, 34, 0x8000000)
        e("s_cbranch_scc1 L_pref")
        if self.x_noq:
            e("s_branch L_pref")
        c("---- wave 0: partial q for 64 columns x 112 rows of wq, publish, gather the whole q of this head pair ----")
        self.srd(20, 32, 896)
        self.srd(24, 38, 3670016)
        e("v_lshlrev_b32 v6, 4, v0")
        e("v_lshrrev_b32 v7, 3, v0")
        e("v_lshlrev_b32 v3, 13, v7")
        e("v_and_b32 v5, 7, v0")
        e("v_lshl_add_u32 v3, v5, 4, v3")
        e("s_and_b32 s72, s5, 3")
        e("s_lshr_b32 s73, s5, 2")
        e(f"s_mul_i32 s74, s72, {112*8192}")
        e("s_lshl_b32 s30, s4, 10")
        e("s_add_u32 s74, s74, s30")
        e("s_lshl_b32 s30, s73, 7")
        e("s_add_u32 s74, s74, s30")
        e("buffer_load_dwordx4 v[16:19], v6, s[20:23], 0 offen")
        for i in range(14):
            e(f"s_add_u32 s30, s74, {i*65536}")
            e(f"buffer_load_dwordx4 v[{32+4*i}:{35+4*i}], v3, s[24:27], s30 offen{self.wqfl}")
        e("s_load_dword s6, s[54:55], 0")
        for i in range(W00):
            self.stream_load(i)
        self.consts()
        self.stamp(14, "s96")
        e("v_cmp_gt_u32 vcc, 56, v0")
        e("v_mov_b32 v22, 0")
        e("v_mov_b32 v23, 1.0")
        e("v_cndmask_b32 v22, v22, v23, vcc")
        e(f"s_waitcnt vmcnt({14 + W00})")
        f = V(8, 8)
        self.unpack8(f, V(16, 4))
        self.ln_stats(f, "v22", V(88, 6))
        for j in range(8):
            self.ln_apply(f[j], f[j], V(88, 6), "v94", "v95")
        e("s_mov_b32 s30, 0x07060302")
        for j in range(4):
            e(f"v_perm_b32 v{4+j}, v{9+2*j}, v{8+2*j}, s30")
        e("v_lshlrev_b32 v24, 4, v0")
        e(f"v_add_u32 v24, {LDS_XN}, v24")
        e("ds_write_b128 v24, v[4:7]")
        e("s_mul_i32 s30, s72, 224")
        e(f"s_add_u32 s30, s30, {LDS_XN}")
        e("v_lshrrev_b32 v3, 3, v0")
        e("v_lshlrev_b32 v3, 1, v3")
        e("v_add_u32 v3, s30, v3")
        e("s_waitcnt lgkmcnt(0)")
        for i in range(14):
            e(f"ds_read_u16 v{16+i}, v3 offset:{16*i}")
        self.tag()
        for i in range(14):
            e(f"s_waitcnt vmcnt({13 - i + W00}) lgkmcnt({13 - i})")
            e(f"v_lshlrev_b32 v{30+(i&1)}, 16, v{16+i}")
            for d in range(4):
                w = 32 + 4 * i + d
                e(f"v_dot2_f32_bf16 v{8+2*d}, v{w}, v{16+i}, {'0' if i == 0 else 'v%d' % (8+2*d)}")
                e(f"v_dot2_f32_bf16 v{9+2*d}, v{w}, v{30+(i&1)}, {'0' if i == 0 else 'v%d' % (9+2*d)}")
        e("s_nop 2")
        for j in range(8):
            e(f"v_add_f32_dpp v{8+j}, v{8+j}, v{8+j} row_ror:8 row_mask:0xf bank_mask:0xf")
        self.xsum(V(8, 8), V(16, 8))
        for j in range(8):
            e(f"v_add_u32 v{8+j}, 0x80, v{8+j}")
        e("s_mov_b32 s64, 0xff00ff00")
        e("s_mov_b32 s65, 0xff00ff00")
        for j in range(4):
            e(f"v_cndmask_b32 v{8+j}, v{8+j}, v{12+j}, s[64:65]")
        self.pack4(V(32, 4), V(8, 4))
        e("s_lshl_b32 s30, s4, 13")
        e(f"s_add_u32 s75, s30, {WS_QX}")
        e("s_lshl_b32 s30, s72, 11")
        e("s_lshl_b32 s31, s73, 8")
        e("s_add_u32 s30, s30, s31")
        e("s_add_u32 s30, s30, s75")
        e("v_lshlrev_b32 v4, 4, v0")
        e("v_add_u32 v4, s30, v4")
        self.srd(16, 54, WS_SIZE)
        e("s_mov_b64 exec, 0xffff")
        e("buffer_store_dwordx4 v[32:35], v4, s[16:19], 0 offen sc1")
        e("s_mov_b64 exec, -1")
        self.stamp(1)
        self.srd(12, 36, 0x8000000)
        for i in range(W00, self.W01):
            self.stream_load(i)
        e("v_lshlrev_b32 v3, 4, v0")
        e("v_add_u32 v4, s75, v3")
        e("v_add_u32 v5, 4096, v4")
        loads = []
        for b in range(4):
            for i in range(2):
                loads.append((V(40 + 8 * b + 4 * i, 4), "v4" if b < 2 else "v5", (b & 1) * 2048 + i * 1024))
        self.poll(loads, 64, V(72, 8), "v95")
        self.stamp(13)
        for b in range(4):
            for i in range(2):
                for j in range(3):
                    e(f"v_and_b32 v{40+8*b+4*i+j}, 0xffffff00, v{40+8*b+4*i+j}")
        for k in range(8):
            e(f"v_add_f32 v{40+k}, v{40+k}, v{48+k}")
            e(f"v_add_f32 v{56+k}, v{56+k}, v{64+k}")
        for k in range(8):
            e(f"v_add_f32 v{40+k}, v{40+k}, v{56+k}")
        for k in range(4):
            e(f"v_cvt_pk_bf16_f32 v{48+k}, v{40+2*k}, v{41+2*k}")
        e("v_lshrrev_b32 v3, 4, v0")
        e("v_lshlrev_b32 v3, 7, v3")
        e("v_and_b32 v4, 7, v0")
        e("v_lshl_add_u32 v3, v4, 4, v3")
        e("v_bfe_u32 v4, v0, 3, 1")
        e("v_lshl_add_u32 v3, v4, 3, v3")
        e(f"v_add_u32 v3, {LDS_Q}, v3")
        e("ds_write_b64 v3, v[48:49]")
        e("ds_write_b64 v3, v[50:51] offset:512")
        for i in range(self.W01, NS):
            self.stream_load(i)
        e("s_branch L_qready")
        c("---- waves 1..7: paced prefetch of the first K tiles ----")
        e("L_pref:")
        self.cur_so = None
        for i in range(W0):
            self.stream_load(i)
        e("s_load_dword s6, s[54:55], 0")
        self.srd(12, 36, 0x8000000)
        self.srd(16, 54, WS_SIZE)
        self.consts()
        self.stamp(14, "s96")
        for i in range(W0, NS):
            e(f"s_waitcnt vmcnt({W - 1})")
            self.stream_load(i)
        e("s_waitcnt lgkmcnt(0)")
        self.tag()
        e("L_qready:")
        c("PV masks v64..v67: lane j0 = l&7 keeps bf16 slot j0 of the A operand")
        e("v_and_b32 v5, 1, v0")
        e("v_mov_b32 v6, 0xffff")
        e("v_lshlrev_b32 v5, 4, v5")
        e("v_lshlrev_b32 v6, v5, v6")
        e("v_bfe_u32 v7, v0, 1, 2")
        for jj in range(4):
            e(f"v_cmp_eq_u32 vcc, {jj}, v7")
            e("s_nop 1")
            e(f"v_cndmask_b32 v{64+jj}, 0, v6, vcc")
        e("v_mov_b32 v84, 0xff800000")
        e("v_bfe_u32 v3, v0, 3, 1")
        e("v_lshlrev_b32 v3, 9, v3")
        e("v_lshrrev_b32 v4, 4, v0")
        e("v_lshl_add_u32 v3, v4, 6, v3")
        e("v_and_b32 v5, 3, v0")
        e("v_lshl_add_u32 v3, v5, 4, v3")
        e(f"v_add_u32 v3, {LDS_Q}, v3")
        e("s_waitcnt lgkmcnt(0)")
        e("s_barrier")
        self.stamp(2)
        e("ds_read_b128 v[8:11], v3")
        e("ds_read_b128 v[12:15], v3 offset:256")
        c("epilogue addresses: v88 = per-wave O write, v89 = (m,l) write, v90 = O read, v91 = (m,l) read, v92 = partial block")
        e("v_lshrrev_b32 v4, 5, v0")
        e("v_lshlrev_b32 v88, 10, v4")
        e("v_and_b32 v5, 15, v0")
        e("v_lshl_add_u32 v88, v5, 5, v88")
        e("v_bfe_u32 v5, v0, 4, 1")
        e("v_lshl_add_u32 v88, v5, 4, v88")
        e("s_lshl_b32 s30, s3, 11")
        e(f"s_add_u32 s30, s30, {LDS_O}")
        e("v_add_u32 v88, s30, v88")
        e("v_bfe_u32 v5, v0, 3, 1")
        e("v_lshlrev_b32 v89, 6, v5")
        e("s_lshl_b32 s30, s3, 3")
        e(f"s_add_u32 s30, s30, {LDS_ML}")
        e("v_add_u32 v89, s30, v89")
        e("v_lshlrev_b32 v3, 4, v0")
        e("s_lshl_b32 s30, s3, 10")
        e(f"s_add_u32 s30, s30, {LDS_O}")
        e("v_add_u32 v90, s30, v3")
        e("s_lshl_b32 s30, s3, 6")
        e(f"s_add_u32 s30, s30, {LDS_ML}")
        e("v_mov_b32 v91, s30")
        e("s_lshl_b32 s30, s4, 1")
        e("s_add_u32 s30, s30, s3")
        e("s_lshl_b32 s30, s30, 5")
        e("s_add_u32 s30, s30, s5")
        e(f"s_mul_i32 s30, s30, {PO_BLK}")
        e(f"s_add_u32 s30, s30, {WS_PO}")
        e("v_add_u32 v92, s30, v3")
        c("roles (s68: 0 none, 1 = output projection, 2 = FFN; s69 = index): ids with g in {4,6} / g in {0,2}")
        lab = self.label("Lrole")
        e("s_mov_b32 s68, 0")
        e("s_mov_b32 s69, 0")
        e("s_and_b32 s30, s4, 1")
        e("s_cmp_lg_u32 s30, 0")
        e(f"s_cbranch_scc1 {lab}")
        e("s_lshr_b32 s30, s4, 1")
        e("s_cmp_ge_u32 s30, 2")
        e(f"s_cbranch_scc1 {lab}a")
        e("s_cmp_ge_u32 s5, 28")
        e(f"s_cbranch_scc1 {lab}")
        e("s_mov_b32 s68, 2")
        e("s_mul_i32 s69, s30, 28")
        e("s_add_u32 s69, s69, s5")
        e(f"s_branch {lab}")
        e(f"{lab}a:")
        e("s_mov_b32 s68, 1")
        e("s_sub_u32 s69, s30, 2")
        e("s_lshl_b32 s69, s69, 5")
        e("s_add_u32 s69, s69, s5")
        e(f"{lab}:")
        e("s_waitcnt lgkmcnt(0)")

        c("================= K phase: scores of 4 keys x 2 heads per pair of MFMAs =================")
        issued = NS

        def post_k(n):
            d = 16 + (n % 4) * 4
            t = 32 + n
            e(f"v_mov_b32_dpp v{t}, v{d} quad_perm:[0,0,0,0] row_mask:0xf bank_mask:0xf")
            e(f"v_add_f32_dpp v{t}, v{d+1}, v{t} quad_perm:[1,1,1,1] row_mask:0xf bank_mask:0xf")
            e(f"v_add_f32_dpp v{t}, v{d+2}, v{t} quad_perm:[2,2,2,2] row_mask:0xf bank_mask:0xf")
            e(f"v_add_f32_dpp v{t}, v{d+3}, v{t} quad_perm:[3,3,3,3] row_mask:0xf bank_mask:0xf")
            e(f"v_max_f32 v84, v84, v{t}")

        for n in range(32):
            i = 2 * n
            e(f"s_waitcnt vmcnt({issued - i - 2})")
            d = 16 + (n % 4) * 4
            e(f"v_mfma_f32_16x16x32_bf16 v[{d}:{d+3}], {self.slot(i)}, v[8:11], 0")
            e(f"v_mfma_f32_16x16x32_bf16 v[{d}:{d+3}], {self.slot(i+1)}, v[12:15], v[{d}:{d+3}]")
            for k in range(2):
                if issued < 128:
                    self.stream_load(issued)
                    issued += 1
            if n >= 2:
                post_k(n - 2)
        e("s_nop 7")
        post_k(30)
        post_k(31)
        self.stamp(3)
        c("softmax over this wave's 128 keys (scores rounded to bf16 first, true max of the wave subtracted)")
        self.xsum(["v84"], ["v85"], op="v_max_f32")
        self.rne("v84", "v84")
        e("v_mov_b32 v86, 0")
        e("v_mov_b32 v87, 0")
        for m in range(16):
            a, b = 32 + 2 * m, 33 + 2 * m
            e(f"v_cvt_pk_bf16_f32 v85, v{a}, v{b}")
            e(f"v_lshlrev_b32 v{a}, 16, v85")
            e(f"v_and_b32 v{b}, 0xffff0000, v85")
            e(f"v_sub_f32 v{a}, v{a}, v84")
            e(f"v_sub_f32 v{b}, v{b}, v84")
            e(f"v_mul_f32 v{a}, s63, v{a}")
            e(f"v_mul_f32 v{b}, s63, v{b}")
            e(f"v_exp_f32 v{a}, v{a}")
            e(f"v_exp_f32 v{b}, v{b}")
            e("s_nop 0")
            e(f"v_add_f32 v86, v86, v{a}")
            e(f"v_add_f32 v87, v87, v{b}")
        e("v_add_f32 v86, v86, v87")
        self.xsum(["v86"], ["v85"])
        e("v_mov_b32 v94, v84")
        e("v_mov_b32 v95, v86")
        e("s_mov_b64 exec, 0x101")
        e("ds_write_b64 v89, v[94:95]")
        e("s_mov_b64 exec, -1")

        c("================= V phase =================")

        def build_a(n):
            a = 68 + (n % 2) * 4
            e(f"v_cvt_pk_bf16_f32 v85, v{32+n}, v{32+n}")
            for jj in range(4):
                e(f"v_and_b32 v{a+jj}, v85, v{64+jj}")

        build_a(0)
        for n in range(32):
            i = 64 + 2 * n
            if n + 1 < 32:
                build_a(n + 1)
            e(f"s_waitcnt vmcnt({issued - i - 2})")
            a = 68 + (n % 2) * 4
            c0 = "0" if n == 0 else "v[76:79]"
            c1 = "0" if n == 0 else "v[80:83]"
            e(f"v_mfma_f32_16x16x32_bf16 v[76:79], v[{a}:{a+3}], {self.slot(i)}, {c0}")
            e(f"v_mfma_f32_16x16x32_bf16 v[80:83], v[{a}:{a+3}], {self.slot(i+1)}, {c1}")
            for k in range(2):
                if issued < 128:
                    self.stream_load(issued)
                    issued += 1
        self.stamp(4)
        e("s_nop 7")
        e("ds_write_b128 v88, v[76:79]")
        e("ds_write_b128 v88, v[80:83] offset:512")
        e("s_waitcnt lgkmcnt(0)")
        e("s_barrier")
        c("---- waves 0,1: merge the 8 waves of head 2g+w and publish the partial ----")
        e("s_cmp_gt_u32 s3, 1")
        e("s_cbranch_scc1 L_pub_done")
        for k in range(4):
            e(f"ds_read_b128 v[{16+4*k}:{19+4*k}], v91 offset:{16*k}")
        for wv in range(8):
            e(f"ds_read_b128 v[{32+4*wv}:{35+4*wv}], v90 offset:{2048*wv}")
        e("v_mov_b32 v10, 0")
        e("s_waitcnt lgkmcnt(8)")
        e("v_max3_f32 v8, v16, v18, v20")
        e("v_max3_f32 v9, v22, v24, v26")
        e("v_max3_f32 v8, v8, v28, v30")
        e("v_max_f32 v8, v8, v9")
        for wv in range(8):
            e(f"v_sub_f32 v{16+2*wv}, v{16+2*wv}, v8")
        for wv in range(8):
            e(f"v_mul_f32 v{16+2*wv}, s63, v{16+2*wv}")
        for wv in range(8):
            e(f"v_exp_f32 v{16+2*wv}, v{16+2*wv}")
        e("s_nop 0")
        e("v_mul_f32 v9, v16, v17")
        for wv in range(1, 8):
            e(f"v_fma_f32 v9, v{16+2*wv}, v{17+2*wv}, v9")
        self.pack4(V(68, 4), ["v9", "v10", "v10", "v8"])
        e("s_waitcnt lgkmcnt(0)")
        for j in (0, 2):
            e(f"v_pk_mul_f32 v[{12+j}:{13+j}], v[16:17], v[{32+j}:{33+j}] op_sel_hi:[0,1]")
        for wv in range(1, 8):
            for j in (0, 2):
                e(f"v_pk_fma_f32 v[{12+j}:{13+j}], v[{16+2*wv}:{17+2*wv}], v[{32+4*wv+j}:{33+4*wv+j}], v[{12+j}:{13+j}] op_sel_hi:[0,1,1]")
        self.pack4(V(64, 4), V(12, 4))
        e("buffer_store_dwordx4 v[64:67], v92, s[16:19], 0 offen sc1")
        e("s_mov_b64 exec, 1")
        e("buffer_store_dwordx4 v[68:71], v92, s[16:19], 0 offen offset:1024 sc1")
        e("s_mov_b64 exec, -1")
        e("L_pub_done:")
        self.stamp(5)
        e("s_cmp_eq_u32 s68, 0")
        e("s_cbranch_scc1 L_end")
        if self.x_norole:
            e("s_branch L_end")
        self.role_dma()
        e("s_cmp_eq_u32 s68, 2")
        e("s_cbranch_scc1 L_s3")
        self.s2()
        e("s_branch L_end")
        e("L_s3:")
        self.s3()
        e("L_end:")
        self.stamp_flush()
        e("L_exit:")
        e("s_endpgm")

    def dma_load(self, text):
        if self.dma_w and self.dma_n >= self.dma_w:
            self.e(f"s_waitcnt vmcnt({self.dma_w - 1})")
        self.dma_n += 1
        self.e(text)

    def role_dma(self):
        e = self.e
        self.dma_n = 0
        done = self.label("Ldma_done")
        s3l = self.label("Ldma_s3")
        e("s_lshl_b32 s30, s3, 6")
        e("v_add_u32 v10, s30, v0")
        e("s_lshl_b32 s71, s3, 10")
        e("s_cmp_eq_u32 s68, 2")
        e(f"s_cbranch_scc1 {s3l}")
        self.c("wo rows h*256.., 112 columns: piece i = t*512 + tid, row = i/14")
        self.srd(20, 40, 3670016)
        e("s_lshr_b32 s30, s69, 2")
        e(f"s_mul_i32 s30, s30, {256 * 896}")
        e("s_and_b32 s31, s69, 3")
        e("s_mul_i32 s31, s31, 224")
        e("s_add_u32 s70, s30, s31")
        e("s_movk_i32 s31, 18725")
        for t in range(7):
            e(f"v_add_u32 v11, {t*512}, v10")
            e("v_mul_lo_u32 v12, v11, s31")
            e("v_lshrrev_b32 v12, 18, v12")
            e("v_mul_u32_u24 v13, 14, v12")
            e("v_sub_u32 v13, v11, v13")
            e("v_mul_u32_u24 v12, 0x380, v12")
            e("v_lshl_add_u32 v12, v13, 4, v12")
            e(f"s_add_u32 m0, s71, {LDS_W + t*8192}")
            e("s_nop 0")
            self.dma_load("buffer_load_dwordx4 v12, s[20:23], s70 offen nt lds")
        e(f"s_branch {done}")
        e(f"{s3l}:")
        self.dma_n = 0
        self.c("32 columns of w_gate and w_up (448 rows x 64 B each), 32 rows of w_down")
        e("v_lshrrev_b32 v11, 2, v10")
        e("v_mul_u32_u24 v11, 0xe00, v11")
        e("v_and_b32 v12, 3, v10")
        e("v_lshl_add_u32 v11, v12, 4, v11")
        e("s_lshl_b32 s70, s69, 6")
        for mtx, p in ((0, 44), (1, 46)):
            self.srd(20, p, 1605632)
            for t in range(4):
                lab = None
                if t == 3:
                    lab = self.label("Lskip")
                    e("s_cmp_gt_u32 s3, 3")
                    e(f"s_cbranch_scc1 {lab}")
                e(f"s_add_u32 s30, s70, {t*128*3584}")
                e(f"s_add_u32 m0, s71, {LDS_W + mtx*28672 + t*8192}")
                e("s_nop 0")
                self.dma_load("buffer_load_dwordx4 v11, s[20:23], s30 offen nt lds")
                if lab:
                    e(f"{lab}:")
        self.srd(20, 48, 1605632)
        e("v_lshlrev_b32 v11, 4, v10")
        e("s_mul_i32 s70, s69, 28672")
        for t in range(4):
            lab = None
            if t == 3:
                lab = self.label("Lskip")
                e("s_cmp_gt_u32 s3, 3")
                e(f"s_cbranch_scc1 {lab}")
            e(f"s_add_u32 s30, s70, {t*8192}")
            e(f"s_add_u32 m0, s71, {LDS_W + 57344 + t*8192}")
            e("s_nop 0")
            self.dma_load("buffer_load_dwordx4 v11, s[20:23], s30 offen nt lds")
            if lab:
                e(f"{lab}:")
        e(f"{done}:")

    def s2(self):
        e = self.e
        e("s_lshr_b32 s72, s69, 2")
        e(f"s_mul_i32 s30, s72, {32 * PO_BLK}")
        e(f"s_add_u32 s30, s30, {WS_PO}")
        e("v_and_b32 v7, 31, v0")
        e(f"v_mul_u32_u24 v7, {PO_BLK}, v7")
        e("v_add_u32 v7, s30, v7")
        e(f"s_mul_i32 s31, s3, {4 * PO_BLK}")
        e("s_add_u32 s30, s30, s31")
        e("v_lshlrev_b32 v5, 4, v0")
        e("v_add_u32 v6, s30, v5")
        e(f"v_add_u32 v9, {2 * PO_BLK}, v6")
        self.c("weight operand address: LDS_W + (32s + 8g + r)*224 + w*32 + (l&3)*8")
        e("v_bfe_u32 v3, v0, 2, 2")
        e("v_lshrrev_b32 v4, 4, v0")
        e("v_lshl_add_u32 v3, v4, 3, v3")
        e("v_mul_u32_u24 v3, 224, v3")
        e("v_and_b32 v11, 3, v0")
        e("v_lshl_add_u32 v3, v11, 3, v3")
        e("s_lshl_b32 s30, s3, 5")
        e(f"s_add_u32 s30, s30, {LDS_W}")
        e("v_add_u32 v3, s30, v3")
        e("s_lshl_b32 s30, s3, 10")
        e(f"s_add_u32 s31, s30, {LDS_O}")
        e("v_add_u32 v72, s31, v5")
        self.c("partial read: lane l takes granule 8*((l&15)>>1) + 2*(l>>4) + (l&1)")
        e("v_bfe_u32 v73, v0, 1, 3")
        e("v_lshlrev_b32 v73, 7, v73")
        e("v_lshl_add_u32 v73, v4, 5, v73")
        e("v_and_b32 v11, 1, v0")
        e("v_lshl_add_u32 v73, v11, 4, v73")
        e(f"v_add_u32 v73, {LDS_O}, v73")
        e("s_and_b32 s30, s69, 3")
        e("s_mul_i32 s30, s30, 448")
        e("s_lshl_b32 s31, s3, 6")
        e("s_add_u32 s30, s30, s31")
        e(f"s_mul_i32 s31, s72, {ROW}")
        e("s_add_u32 s30, s30, s31")
        e(f"s_add_u32 s30, s30, {WS_Y}")
        e("v_lshlrev_b32 v77, 2, v0")
        e("v_add_u32 v77, s30, v77")
        self.pack_dw_consts("v78", "v79", 66)
        e("s_lshl_b32 s70, s3, 2")
        e("s_add_u32 s71, s70, 1")
        e("s_add_u32 s73, s70, 2")
        e("s_add_u32 s78, s70, 3")
        e("s_waitcnt vmcnt(0)")
        e("s_barrier")
        e("s_cmp_gt_u32 s3, 6")
        e("s_cbranch_scc1 L_s2_now")
        for s in range(8):
            e(f"ds_read_b64_tr_b16 a[{4*s}:{4*s+1}], v3 offset:{s*7168}")
            e(f"ds_read_b64_tr_b16 a[{4*s+2}:{4*s+3}], v3 offset:{s*7168 + 896}")
        e("L_s2_now:")
        self.stamp(12)
        self.poll([(V(48, 4), "v7", 1024), (V(32, 4), "v6", 0), (V(36, 4), "v6", PO_BLK), (V(40, 4), "v9", 0),
                   (V(44, 4), "v9", PO_BLK)], 32, V(52, 5), "v95", unpack=False, backoff=self.bo2)
        self.stamp(15, "s7")
        self.stamp(6)
        self.unpack4(V(48, 4))
        e("v_mov_b32 v9, v51")
        self.unpack4(V(32, 4))
        e("v_max_f32_dpp v9, v9, v9 quad_perm:[1,0,3,2] row_mask:0xf bank_mask:0xf")
        self.unpack4(V(36, 4))
        e("v_max_f32_dpp v9, v9, v9 quad_perm:[2,3,0,1] row_mask:0xf bank_mask:0xf")
        self.unpack4(V(40, 4))
        e("v_max_f32_dpp v9, v9, v9 row_half_mirror row_mask:0xf bank_mask:0xf")
        self.unpack4(V(44, 4))
        e("v_max_f32_dpp v9, v9, v9 row_mirror row_mask:0xf bank_mask:0xf")
        e("s_nop 0")
        e("v_mov_b32 v10, v9")
        e("s_nop 1")
        e("v_permlane16_swap_b32 v9, v10")
        e("s_nop 1")
        e("v_max_f32 v9, v9, v10")
        e("v_sub_f32 v10, v51, v9")
        e("v_mul_f32 v10, s63, v10")
        e("v_exp_f32 v10, v10")
        e("s_nop 0")
        e("v_mul_f32 v11, v10, v48")
        e("v_readlane_b32 s74, v10, s70")
        e("v_readlane_b32 s75, v10, s71")
        e("v_readlane_b32 s76, v10, s73")
        e("v_readlane_b32 s77, v10, s78")
        e("v_add_f32_dpp v11, v11, v11 quad_perm:[1,0,3,2] row_mask:0xf bank_mask:0xf")
        for j in (0, 2):
            e(f"v_pk_mul_f32 v[{12+j}:{13+j}], s[74:75], v[{32+j}:{33+j}] op_sel_hi:[0,1]")
        for k in range(1, 4):
            sp = (74 + k) & ~1
            hi = (74 + k) & 1
            for j in (0, 2):
                e(f"v_pk_fma_f32 v[{12+j}:{13+j}], s[{sp}:{sp+1}], v[{32+4*k+j}:{33+4*k+j}], v[{12+j}:{13+j}] op_sel:[{hi},0,0] op_sel_hi:[{hi},1,1]")
        e("ds_write_b128 v72, v[12:15]")
        e("v_add_f32_dpp v11, v11, v11 quad_perm:[2,3,0,1] row_mask:0xf bank_mask:0xf")
        e("s_waitcnt lgkmcnt(0)")
        e("s_barrier")
        e("s_cmp_gt_u32 s3, 6")
        e("s_cbranch_scc1 L_end")
        for wv in range(8):
            e(f"ds_read_b128 v[{32+4*wv}:{35+4*wv}], v73 offset:{1024*wv}")
        e("v_add_f32_dpp v11, v11, v11 row_half_mirror row_mask:0xf bank_mask:0xf")
        e("s_nop 1")
        e("v_add_f32_dpp v11, v11, v11 row_mirror row_mask:0xf bank_mask:0xf")
        e("s_nop 0")
        e("v_mov_b32 v10, v11")
        e("s_nop 1")
        e("v_permlane16_swap_b32 v11, v10")
        e("s_nop 1")
        e("v_add_f32 v11, v11, v10")
        e("v_rcp_f32 v10, v11")
        for pair in range(4):
            e(f"s_waitcnt lgkmcnt({6 - 2*pair})")
            for j in (0, 2):
                e(f"v_pk_add_f32 v[{32+8*pair+j}:{33+8*pair+j}], v[{32+8*pair+j}:{33+8*pair+j}], v[{36+8*pair+j}:{37+8*pair+j}]")
        for j in (0, 2):
            e(f"v_pk_add_f32 v[{32+j}:{33+j}], v[{32+j}:{33+j}], v[{40+j}:{41+j}]")
            e(f"v_pk_add_f32 v[{48+j}:{49+j}], v[{48+j}:{49+j}], v[{56+j}:{57+j}]")
        e("v_fma_f32 v9, -v10, v11, 1.0")
        e("v_fma_f32 v10, v9, v10, v10")
        for j in (0, 2):
            e(f"v_pk_add_f32 v[{32+j}:{33+j}], v[{32+j}:{33+j}], v[{48+j}:{49+j}]")
        for j in (0, 2):
            e(f"v_pk_mul_f32 v[{32+j}:{33+j}], v[10:11], v[{32+j}:{33+j}] op_sel_hi:[0,1]")
        e("v_cvt_pk_bf16_f32 v12, v32, v33")
        e("v_cvt_pk_bf16_f32 v13, v34, v35")
        e("s_nop 1")

        def amov(s):
            b = 40 + 4 * (s % 2)
            e(f"v_mov_b32_dpp v{b}, v12 row_newbcast:{2*s} row_mask:0xf bank_mask:0xf")
            e(f"v_mov_b32_dpp v{b+1}, v13 row_newbcast:{2*s} row_mask:0xf bank_mask:0xf")
            e(f"v_mov_b32_dpp v{b+2}, v12 row_newbcast:{2*s+1} row_mask:0xf bank_mask:0xf")
            e(f"v_mov_b32_dpp v{b+3}, v13 row_newbcast:{2*s+1} row_mask:0xf bank_mask:0xf")

        amov(0)
        for s in range(8):
            if s < 7:
                amov(s + 1)
            else:
                e("s_nop 0")
            b = 40 + 4 * (s % 2)
            cc = "0" if s == 0 else "v[16:19]"
            e(f"v_mfma_f32_16x16x32_bf16 v[16:19], v[{b}:{b+3}], a[{4*s}:{4*s+3}], {cc}")
        e("s_nop 7")
        self.pack_dw("v24", "v16", "v25", "v78", "v79", "s[66:67]")
        e("s_mov_b64 exec, 0xffff")
        e("buffer_store_dword v24, v77, s[16:19], 0 offen sc1")
        e("s_mov_b64 exec, -1")
        self.stamp(7)

    def s3(self):
        e = self.e
        self.c("lane (gl = l&15, row = l>>4) ends up owning column 64w + 4gl + row of h1")
        self.srd(24, 32, 896)
        e("v_and_b32 v9, 15, v0")
        e("v_lshrrev_b32 v4, 4, v0")
        e("v_lshl_add_u32 v5, v9, 2, v4")
        e("s_lshl_b32 s30, s3, 6")
        e("v_add_lshl_u32 v5, v5, s30, 1")
        e("buffer_load_ushort v80, v5, s[24:27], 0 offen")
        e(f"v_add_u32 v86, {LDS_H}, v5")
        e(f"v_mul_u32_u24 v8, {4*ROW}, v4")
        e("v_lshl_add_u32 v8, v9, 4, v8")
        e("s_lshl_b32 s30, s3, 8")
        e(f"s_add_u32 s30, s30, {WS_Y}")
        e("v_add_u32 v8, s30, v8")
        e(f"v_add_u32 v10, {2*ROW}, v8")
        self.c("gate/up operand address: LDS_W + m*28672 + (32s + 8g + r)*64 + ct*32 + (l&3)*8")
        e("v_bfe_u32 v3, v0, 2, 2")
        e("v_lshl_add_u32 v3, v4, 3, v3")
        e("v_lshlrev_b32 v6, 6, v3")
        e("v_and_b32 v11, 3, v0")
        e("v_lshl_add_u32 v6, v11, 3, v6")
        e("s_and_b32 s30, s3, 1")
        e("s_mul_i32 s30, s30, 28672")
        e("s_bfe_u32 s31, s3, 0x10001")
        e("s_lshl_b32 s31, s31, 5")
        e("s_add_u32 s30, s30, s31")
        e("s_lshr_b32 s31, s3, 2")
        e(f"s_mul_i32 s31, s31, {7 * 2048}")
        e("s_add_u32 s30, s30, s31")
        e(f"s_add_u32 s30, s30, {LDS_W}")
        e("v_add_u32 v6, s30, v6")
        e("v_mul_u32_u24 v7, 0x380, v3")
        e("v_lshl_add_u32 v7, v11, 3, v7")
        e("s_lshl_b32 s30, s3, 7")
        e(f"s_add_u32 s30, s30, {LDS_W + 57344}")
        e("v_add_u32 v7, s30, v7")
        e("s_lshr_b32 s30, s3, 2")
        e("s_lshl_b32 s30, s30, 8")
        e("s_and_b32 s31, s3, 1")
        e("s_lshl_b32 s31, s31, 7")
        e("s_add_u32 s30, s30, s31")
        e("s_bfe_u32 s31, s3, 0x10001")
        e("s_lshl_b32 s31, s31, 6")
        e("s_add_u32 s30, s30, s31")
        e(f"s_add_u32 s30, s30, {LDS_GU}")
        e("v_lshl_add_u32 v88, v9, 2, s30")
        e("s_lshr_b32 s30, s3, 2")
        e("s_mul_i32 s30, s30, 448")
        e(f"s_add_u32 s30, s30, {LDS_H}")
        e("v_lshl_add_u32 v89, v4, 4, s30")
        self.c("activation lane map: f = 8*(l>>4) + (l&7)")
        e("v_and_b32 v11, 7, v0")
        e("v_lshl_add_u32 v90, v4, 3, v11")
        e("v_lshlrev_b32 v90, 2, v90")
        e(f"v_add_u32 v90, {LDS_GU}, v90")
        e("v_and_b32 v11, 1, v0")
        e("v_mov_b32 v91, 0x01000504")
        e("v_mov_b32 v92, 0x05040100")
        e("v_cmp_eq_u32 vcc, 1, v11")
        e(f"s_mul_i32 s30, s69, {ROW}")
        e("s_lshl_b32 s31, s3, 8")
        e("v_cndmask_b32 v91, v91, v92, vcc")
        e("s_add_u32 s30, s30, s31")
        e(f"s_add_u32 s30, s30, {WS_Z}")
        e("v_lshl_add_u32 v93, v0, 2, s30")
        self.pack_dw_consts("v60", "v61", 46)
        e("s_lshl_b32 s30, s3, 3")
        e(f"s_add_u32 s30, s30, {LDS_ST}")
        e("v_lshl_add_u32 v63, v4, 2, s30")
        e("v_mov_b32 v40, 0")
        e("s_mov_b32 s48, 0x00010001")
        e("s_mov_b32 s49, 0")
        e("s_mov_b64 exec, s[48:49]")
        e("ds_write_b32 v63, v40")
        e("s_mov_b64 exec, -1")
        self.c("stage-4 gather address: Z + (8i + (l>>3))*ROW + (j3>>2)*128 + (l&7)*16")
        e("v_lshrrev_b32 v62, 3, v0")
        e(f"v_mul_u32_u24 v62, {ROW}, v62")
        e("v_and_b32 v12, 7, v0")
        e("v_lshl_add_u32 v62, v12, 4, v62")
        e("s_lshr_b32 s30, s69, 2")
        e("s_lshl_b32 s30, s30, 7")
        e(f"s_add_u32 s30, s30, {WS_Z}")
        e("v_add_u32 v62, s30, v62")
        e("s_mov_b32 s40, 0xffff0000")
        e("s_mov_b32 s41, 0")
        e("s_mov_b32 s42, 0")
        e("s_mov_b32 s43, 0x0000ffff")
        e("s_mov_b32 s44, 0")
        e("s_mov_b32 s45, 0xffff0000")
        e("v_mov_b32 v81, 0x3d372713")
        e("s_waitcnt vmcnt(0)")
        e("s_barrier")
        for s in range(7):
            e(f"ds_read_b64_tr_b16 a[{4*s}:{4*s+1}], v6 offset:{s*2048}")
            e(f"ds_read_b64_tr_b16 a[{4*s+2}:{4*s+3}], v6 offset:{s*2048 + 256}")
        e("s_cmp_gt_u32 s3, 6")
        e("s_cbranch_scc1 L_s3_notr")
        for t in range(4):
            e(f"ds_read_b64_tr_b16 a[{32+4*t}:{33+4*t}], v7 offset:{t*32}")
            e(f"ds_read_b64_tr_b16 a[{34+4*t}:{35+4*t}], v7 offset:{t*32 + 3584}")
        e("L_s3_notr:")
        self.c("column sums of this wave's gate/up tile over its half of K (vector of ones)")
        for j in range(4):
            e(f"v_mov_b32 v{20+j}, 0x3f803f80")
        e("v_lshlrev_b32 v80, 16, v80")
        e("s_waitcnt lgkmcnt(0)")
        for s in range(7):
            cc = "0" if s == 0 else "v[16:19]"
            e(f"v_mfma_f32_16x16x32_bf16 v[16:19], v[20:23], a[{4*s}:{4*s+3}], {cc}")
        e("s_nop 7")
        e("s_mov_b64 exec, 0xffff")
        e("ds_write_b32 v88, v16 offset:512")
        e("s_mov_b64 exec, -1")
        e("s_waitcnt lgkmcnt(0)")
        e("s_barrier")
        e("ds_read_b32 v16, v90 offset:512")
        e("ds_read_b32 v17, v90 offset:768")
        e("ds_read_b32 v18, v90 offset:640")
        e("ds_read_b32 v19, v90 offset:896")
        e("s_waitcnt lgkmcnt(0)")
        e("v_add_f32 v94, v16, v17")
        e("v_add_f32 v84, v18, v19")
        e("s_cmp_gt_u32 s3, 6")
        e("s_cbranch_scc1 L_s3_nogather")
        self.stamp(12)
        self.poll([(V(32, 4), "v8", 0), (V(36, 4), "v8", ROW), (V(40, 4), "v10", 0), (V(44, 4), "v10", ROW)],
                  32, V(48, 4), "v12", backoff=self.bo3)
        self.stamp(15, "s7")
        self.stamp(6)
        for j in (0, 2):
            e(f"v_pk_add_f32 v[{32+j}:{33+j}], v[{32+j}:{33+j}], v[{36+j}:{37+j}]")
            e(f"v_pk_add_f32 v[{40+j}:{41+j}], v[{40+j}:{41+j}], v[{44+j}:{45+j}]")
        for j in (0, 2):
            e(f"v_pk_add_f32 v[{32+j}:{33+j}], v[{32+j}:{33+j}], v[{40+j}:{41+j}]")
        self.rowscatter4(V(32, 4))
        self.rne("v32", "v32")
        e("v_add_f32 v32, v32, v80")
        e("v_cvt_pk_bf16_f32 v36, v32, v32")
        e("ds_write_b16 v86, v36")
        e("v_lshlrev_b32 v40, 16, v36")
        e("v_mul_f32 v41, v40, v40")
        e("s_nop 0")
        for st in ("quad_perm:[1,0,3,2]", "quad_perm:[2,3,0,1]", "row_half_mirror", "row_mirror"):
            e(f"v_add_f32_dpp v40, v40, v40 {st} row_mask:0xf bank_mask:0xf")
            e(f"v_add_f32_dpp v41, v41, v41 {st} row_mask:0xf bank_mask:0xf")
            e("s_nop 0")
        e("s_nop 0")
        e("v_permlane16_swap_b32 v40, v41")
        e("s_nop 0")
        e("v_add_f32 v40, v40, v41")
        e("v_mov_b32 v41, v40")
        e("s_nop 1")
        e("v_permlane32_swap_b32 v40, v41")
        e("s_nop 0")
        e("v_add_f32 v40, v40, v41")
        e("s_mov_b64 exec, s[48:49]")
        e("ds_write_b32 v63, v40")
        e("s_mov_b64 exec, -1")
        e("L_s3_nogather:")
        e("s_waitcnt lgkmcnt(0)")
        e("s_barrier")
        regs = [64, 68, 72, 76, 48, 52, 56]
        for s in range(7):
            e(f"ds_read_b128 v[{regs[s]}:{regs[s]+3}], v89 offset:{64*s}")
        e(f"v_mov_b32 v8, {LDS_ST}")
        for k in range(4):
            e(f"ds_read_b128 v[{24+4*k}:{27+4*k}], v8 offset:{16*k}")
        for s in range(7):
            e(f"s_waitcnt lgkmcnt({10-s})")
            cc = "0" if s == 0 else "v[16:19]"
            e(f"v_mfma_f32_16x16x32_bf16 v[16:19], v[{regs[s]}:{regs[s]+3}], a[{4*s}:{4*s+3}], {cc}")
        e("s_waitcnt lgkmcnt(0)")
        for k in range(4):
            e(f"v_pk_add_f32 v[{24+4*k}:{25+4*k}], v[{24+4*k}:{25+4*k}], v[{26+4*k}:{27+4*k}]")
        e("v_pk_add_f32 v[24:25], v[24:25], v[28:29]")
        e("v_pk_add_f32 v[32:33], v[32:33], v[36:37]")
        e("v_pk_add_f32 v[24:25], v[24:25], v[32:33]")
        e(f"v_mul_f32 v44, 0x{F_INV448:08x}, v24")
        e(f"v_mul_f32 v42, 0x{F_INV448:08x}, v25")
        e("s_mov_b64 exec, 0xffff")
        e("ds_write_b32 v88, v16")
        e("s_mov_b64 exec, -1")
        e("v_fma_f32 v42, -v44, v44, v42")
        e("v_max_f32 v42, 0, v42")
        e("v_cvt_pk_bf16_f32 v40, v44, v42")
        e("v_and_b32 v42, 0xffff0000, v40")
        e("v_lshlrev_b32 v40, 16, v40")
        e(f"v_add_f32 v42, 0x{F_EPS:08x}, v42")
        self.rne("v42", "v42")
        e("v_sqrt_f32 v41, v42")
        e("s_nop 0")
        self.rne("v41", "v41")
        e("v_rcp_f32 v42, v41")
        e("s_waitcnt lgkmcnt(0)")
        e("s_barrier")
        e("s_cmp_gt_u32 s3, 6")
        e("s_cbranch_scc1 L_s3_w7")
        e("ds_read_b32 v16, v90")
        e("ds_read_b32 v17, v90 offset:256")
        e("ds_read_b32 v18, v90 offset:128")
        e("ds_read_b32 v19, v90 offset:384")
        e("s_waitcnt lgkmcnt(2)")
        e("v_add_f32 v16, v16, v17")
        e("v_fma_f32 v16, -v40, v94, v16")
        e("s_waitcnt lgkmcnt(0)")
        e("v_add_f32 v18, v18, v19")
        e("v_fma_f32 v18, -v40, v84, v18")
        e("v_mul_f32 v16, v16, v42")
        e("v_mul_f32 v18, v18, v42")
        e("v_cvt_pk_bf16_f32 v17, v16, v18")
        e("v_lshlrev_b32 v16, 16, v17")
        e("v_and_b32 v18, 0xffff0000, v17")
        e("v_mul_f32 v17, v16, v16")
        e("v_mul_f32 v17, v17, v16")
        e("v_fma_f32 v17, v17, v81, v16")
        e("v_mul_f32 v17, 0xc0135761, v17")
        e("v_min_f32 v17, 0x42fc0000, v17")
        e("v_exp_f32 v17, v17")
        e("s_nop 0")
        e("v_add_f32 v17, 1.0, v17")
        e("v_rcp_f32 v19, v17")
        e("s_nop 0")
        e("v_mul_f32 v20, v16, v19")
        self.rne("v20", "v20")
        e("v_mul_f32 v20, v20, v18")
        e("v_cvt_pk_bf16_f32 v20, v20, v20")
        e("s_nop 1")
        e("v_mov_b32_dpp v21, v20 quad_perm:[1,0,3,2] row_mask:0xf bank_mask:0xf")
        e("v_perm_b32 v20, v20, v21, v91")
        e("s_nop 1")
        for jj in range(4):
            e(f"v_mov_b32_dpp v{16+jj}, v20 row_newbcast:{2*jj} row_mask:0xf bank_mask:0xf")
        e("s_nop 1")
        for t in range(4):
            e(f"v_mfma_f32_16x16x32_bf16 v[{32+4*t}:{35+4*t}], v[16:19], a[{32+4*t}:{35+4*t}], 0")
        e("s_nop 5")
        e("v_cndmask_b32 v32, v32, v36, s[40:41]")
        e("v_cndmask_b32 v32, v32, v40, s[42:43]")
        e("s_nop 0")
        e("v_cndmask_b32 v32, v32, v44, s[44:45]")
        e("s_nop 1")
        self.pack_dw("v24", "v32", "v25", "v60", "v61", "s[46:47]")
        e("buffer_store_dword v24, v93, s[16:19], 0 offen sc1")
        self.stamp(7)
        e("s_waitcnt vmcnt(0)")
        e("s_barrier")
        e("s_branch L_end")
        self.c("---- stage 4: wave 7 of every 4th FFN workgroup sums 56 partial rows for 32 output columns ----")
        e("L_s3_w7:")
        e("s_and_b32 s30, s69, 3")
        e("s_cmp_lg_u32 s30, 0")
        e("s_cbranch_scc1 L_end")
        e("v_and_b32 v12, 7, v0")
        e("v_lshl_add_u32 v5, v12, 2, v4")
        e("s_lshl_b32 s30, s69, 3")
        e("v_add_lshl_u32 v5, v5, s30, 1")
        e(f"v_add_u32 v8, {LDS_H}, v5")
        e("ds_read_u16 v32, v8")
        self.srd(24, 50, 896)
        loads = []
        for i in range(7):
            e(f"v_add_u32 v{16+i}, {i*8*ROW}, v62")
            loads.append((V(64 + 4 * i, 4), f"v{16+i}", 0))
        e("s_mov_b32 s48, 0x00ff00ff")
        e("s_mov_b32 s49, 0x00ff00ff")
        e("s_waitcnt lgkmcnt(0)")
        e("v_lshlrev_b32 v32, 16, v32")
        e("s_barrier")
        self.stamp(10)
        self.poll(loads, 32, V(24, 7), "v95")
        self.stamp(11, "s7")
        self.stamp(8)
        for j in (0, 2):
            e(f"v_pk_add_f32 v[{64+j}:{65+j}], v[{64+j}:{65+j}], v[{68+j}:{69+j}]")
            e(f"v_pk_add_f32 v[{72+j}:{73+j}], v[{72+j}:{73+j}], v[{76+j}:{77+j}]")
            e(f"v_pk_add_f32 v[{80+j}:{81+j}], v[{80+j}:{81+j}], v[{84+j}:{85+j}]")
        for j in (0, 2):
            e(f"v_pk_add_f32 v[{64+j}:{65+j}], v[{64+j}:{65+j}], v[{72+j}:{73+j}]")
            e(f"v_pk_add_f32 v[{80+j}:{81+j}], v[{80+j}:{81+j}], v[{88+j}:{89+j}]")
        for j in (0, 2):
            e(f"v_pk_add_f32 v[{64+j}:{65+j}], v[{64+j}:{65+j}], v[{80+j}:{81+j}]")
        e("s_nop 0")
        for j in range(4):
            e(f"v_add_f32_dpp v{64+j}, v{64+j}, v{64+j} row_ror:8 row_mask:0xf bank_mask:0xf")
        self.rowscatter4(V(64, 4))
        self.rne("v64", "v64")
        e("v_add_f32 v64, v64, v32")
        e("v_cvt_pk_bf16_f32 v68, v64, v64")
        e("s_mov_b64 exec, s[48:49]")
        e("buffer_store_short v68, v5, s[24:27], 0 offen" + self.outfl)
        e("s_cmp_lg_u32 s69, 0")
        e("s_cbranch_scc1 L_s4_done")
        e("v_mov_b32 v8, s6")
        e("v_mov_b32 v9, 0")
        e("s_mov_b64 exec, 1")
        e("buffer_store_dword v8, v9, s[16:19], 0 offen sc1")
        e("L_s4_done:")
        e("s_mov_b64 exec, -1")
        self.stamp(9)

    def text(self):
        self.build()
        src = HDR + f"; @launch grid=(256,1,1) block=(512,1,1) lds={LDS_TOTAL}\n" + DOC
        src += '.amdgcn_target "amdgcn-amd-amdhsa--gfx950"\n.text\n'
        src += f".globl {KERN}\n.p2align 8\n.type {KERN},@function\n{KERN}:\n"
        src += "\n".join(self.o) + "\n"
        nacc = self.NS * 4
        src += f""".section .rodata,"a"
.p2align 6
.amdhsa_kernel {KERN}
  .amdhsa_next_free_vgpr {96 + nacc}
  .amdhsa_next_free_sgpr 102
  .amdhsa_accum_offset 96
  .amdhsa_group_segment_fixed_size 0
  .amdhsa_kernarg_size 96
  .amdhsa_user_sgpr_count 2
  .amdhsa_user_sgpr_kernarg_segment_ptr 1
  .amdhsa_system_sgpr_workgroup_id_x 1
.end_amdhsa_kernel
"""
        return src


if __name__ == "__main__":
    import argparse
    ap = argparse.ArgumentParser()
    ap.add_argument("-o", default="k10.s")
    ap.add_argument("--NS", type=int, default=32)
    ap.add_argument("--W0", type=int, default=12)
    ap.add_argument("--W", type=int, default=8)
    ap.add_argument("--stamps", action="store_true")
    ap.add_argument("--light", action="store_true")
    ap.add_argument("--wq_plain", action="store_true")
    ap.add_argument("--dma_w", type=int, default=2)
    ap.add_argument("--outfl", default=" sc1")
    ap.add_argument("--bo2", default="")
    ap.add_argument("--bo3", default="")
    ap.add_argument("--W00", type=int, default=12)
    ap.add_argument("--W01", type=int, default=99)
    ap.add_argument("--x_nodma", action="store_true")
    ap.add_argument("--x_noq", action="store_true")
    ap.add_argument("--x_norole", action="store_true")
    a = ap.parse_args()
    g = Gen(NS=a.NS, W0=a.W0, W=a.W, stamps=a.stamps, light=a.light)
    if a.x_nodma:
        Gen.role_dma = lambda self: None
    g.wqfl = "" if a.wq_plain else " nt"
    g.W00 = a.W00
    g.W01 = a.W01
    g.bo2 = tuple(int(x) for x in a.bo2.split(",")) if a.bo2 else None
    g.bo3 = tuple(int(x) for x in a.bo3.split(",")) if a.bo3 else None
    g.outfl = a.outfl
    g.dma_w = a.dma_w
    g.x_noq = a.x_noq
    g.x_norole = a.x_norole
    open(a.o, "w").write(g.text())
```

```python
NAME = "sequential_preLN__gqa_block_cached__geglu_ffn__decode"
KERN = NAME + "_kernel"
HDR = open("cdna_kernels/%s.s.ref" % NAME).read().split("; Override launch")[0]

WS_QX = 0x1000
WS_PO = 0x20000
PO_BLK = 1152
WS_Y = 0x100000
WS_Z = 0x120000
ROW = 2048
WS_STAMP = 64 << 20
WS_SIZE = 512 << 20

LDS_W = 0
LDS_O = 86016
LDS_ML = LDS_O + 16384
LDS_Q = LDS_ML + 128
LDS_H = LDS_Q + 1024
LDS_XN = LDS_H + 1024
LDS_GU = LDS_XN + 1024
LDS_CS = LDS_GU + 512
LDS_ST = LDS_CS + 512
LDS_TOTAL = LDS_ST + 64

CEXP = 0x3DB8AA3B
F_INV448 = 0x3B124925
F_448 = 0x43E00000
F_EPS = 0x3727C5AC
POLL_MAX = 0x100000


DOC = """; One persistent launch, 256 workgroups x 8 waves, one workgroup per CU.
"""


def V(a, n):
    return [f"v{a+i}" for i in range(n)]


class Gen:
    def __init__(self, NS=40, W0=8, W=6, stamps=False, light=False):
        self.o = []
        self.NS, self.W0, self.W = NS, W0, W
        self.stamps = stamps
        self.light = light
        self.lab = 0
        self.s2kflag = False
        self.dma_w = 0
        self.outfl = ' sc1'
        self.bo2 = None
        self.bo3 = None
        self.wqfl = ' nt'
        self.W00 = W0
        self.W01 = NS
        self.x_noq = False
        self.x_norole = False

    def e(self, s):
        for line in s.strip("\n").split("\n"):
            line = line.strip()
            if not line:
                continue
            self.o.append(line if line.endswith(":") or line.startswith(";") else "    " + line)

    def c(self, text):
        self.o.append("    ; " + text)

    def label(self, p="L"):
        self.lab += 1
        return f"{p}_{self.lab}"

    def stamp(self, k, src=None):
        if not self.stamps or (self.light and k not in (4, 9, 14)):
            return
        if src is None:
            self.e("s_memrealtime s[98:99]")
            self.e("s_waitcnt lgkmcnt(0)")
            self.e(f"s_mov_b32 s{80+k}, s98")
        else:
            self.e(f"s_mov_b32 s{80+k}, {src}")

    def stamp_flush(self):
        if not self.stamps:
            return
        e = self.e
        e("s_mov_b64 exec, -1")
        for k in range(16):
            e(f"v_mov_b32 v{32+k}, s{80+k}")
        e("s_lshl_b32 s30, s2, 3")
        e("s_add_u32 s30, s30, s3")
        e("s_lshl_b32 s30, s30, 6")
        e(f"s_add_u32 s30, s30, {WS_STAMP}")
        e("v_mov_b32 v3, s30")
        e("s_mov_b64 exec, 1")
        for k in range(4):
            e(f"buffer_store_dwordx4 v[{32+4*k}:{35+4*k}], v3, s[16:19], 0 offen offset:{16*k}")

    def rne(self, dst, src):
        self.e(f"v_cvt_pk_bf16_f32 {dst}, {src}, {src}")
        self.e(f"v_lshlrev_b32 {dst}, 16, {dst}")

    def wave_sum1(self, r):
        self.e("s_nop 1")
        for st in ("row_shr:1 row_mask:0xf bank_mask:0xf bound_ctrl:0", "row_shr:2 row_mask:0xf bank_mask:0xf bound_ctrl:0",
                   "row_shr:4 row_mask:0xf bank_mask:0xf bound_ctrl:0", "row_shr:8 row_mask:0xf bank_mask:0xf bound_ctrl:0",
                   "row_bcast:15 row_mask:0xa bank_mask:0xf", "row_bcast:31 row_mask:0xc bank_mask:0xf"):
            self.e(f"v_add_f32_dpp {r}, {r}, {r} {st}")
            self.e("s_nop 1")

    def pack4(self, w, v):
        self.e(f"v_perm_b32 {w[0]}, {v[0]}, {v[3]}, s58")
        self.e(f"v_perm_b32 {w[1]}, {v[1]}, {v[3]}, s59")
        self.e(f"v_perm_b32 {w[2]}, {v[2]}, {v[3]}, s60")
        self.e(f"v_add3_u32 {w[3]}, {w[0]}, {w[1]}, {w[2]}")
        self.e(f"v_sub_u32 {w[3]}, s6, {w[3]}")

    def pack_dw(self, out, v, tmp, selv, vtag, m3):
        e = self.e
        e(f"v_mov_b32_dpp {tmp}, {v} quad_perm:[3,3,3,3] row_mask:0xf bank_mask:0xf")
        e(f"v_perm_b32 {out}, {v}, {tmp}, {selv}")
        e("s_nop 1")
        e(f"v_add_u32_dpp {tmp}, {out}, {out} quad_perm:[1,0,3,2] row_mask:0xf bank_mask:0xf")
        e("s_nop 1")
        e(f"v_add_u32_dpp {tmp}, {tmp}, {tmp} quad_perm:[2,3,0,1] row_mask:0xf bank_mask:0xf")
        e(f"v_sub_u32 {tmp}, {vtag}, {tmp}")
        e(f"v_cndmask_b32 {out}, {out}, {tmp}, {m3}")

    def pack_dw_consts(self, selv, vtag, m3lo):
        e = self.e
        e(f"s_mov_b32 s{m3lo}, 0x88888888")
        e(f"s_mov_b32 s{m3lo+1}, 0x88888888")
        e(f"v_and_b32 {selv}, 3, v0")
        e(f"v_add_u32 {selv}, 0x07060501, {selv}")
        e(f"v_mov_b32 {vtag}, 0x0c0c0c0c")
        e(f"v_cndmask_b32 {selv}, {selv}, {vtag}, s[{m3lo}:{m3lo+1}]")
        e(f"v_mov_b32 {vtag}, s6")

    def unpack4(self, w):
        self.e(f"v_perm_b32 {w[3]}, {w[1]}, {w[0]}, s61")
        self.e(f"v_perm_b32 {w[3]}, {w[2]}, {w[3]}, s62")

    def poll(self, loads, sbase, temps, acc, unpack=True, backoff=None):
        e = self.e
        n = len(loads)
        lp = self.label("Lpoll")
        dn = self.label("Lpolled")
        sm = [f"s[{sbase+2*k}:{sbase+2*k+1}]" for k in range(n)]
        e("s_mov_b32 s7, 0")
        for regs, va, off in loads:
            r0 = int(regs[0][1:])
            e(f"buffer_load_dwordx4 v[{r0}:{r0+3}], {va}, s[16:19], 0 offen offset:{off} sc1")
        e(f"s_branch {lp}w")
        e(f"{lp}:")
        for k, (regs, va, off) in enumerate(loads):
            sk = self.label("Lsk")
            r0 = int(regs[0][1:])
            e(f"s_cmp_eq_u64 {sm[k]}, 0")
            e(f"s_cbranch_scc1 {sk}")
            e(f"s_mov_b64 exec, {sm[k]}")
            e(f"buffer_load_dwordx4 v[{r0}:{r0+3}], {va}, s[16:19], 0 offen offset:{off} sc1")
            e(f"{sk}:")
        e("s_mov_b64 exec, -1")
        e(f"{lp}w:")
        e("s_waitcnt vmcnt(0)")
        for k, (w, va, off) in enumerate(loads):
            e(f"v_add3_u32 {temps[k]}, {w[0]}, {w[1]}, {w[2]}")
        for k, (w, va, off) in enumerate(loads):
            e(f"v_add3_u32 {temps[k]}, {temps[k]}, {w[3]}, s57")
        rest = list(temps[:n])
        e(f"v_or3_b32 {acc}, {rest[0]}, {rest[1]}, {rest[2]}")
        rest = rest[3:]
        while rest:
            if len(rest) >= 2:
                e(f"v_or3_b32 {acc}, {acc}, {rest[0]}, {rest[1]}")
                rest = rest[2:]
            else:
                e(f"v_or_b32 {acc}, {acc}, {rest[0]}")
                rest = rest[1:]
        e(f"v_cmp_ne_u32 vcc, 0, {acc}")
        e("s_add_u32 s7, s7, 1")
        e(f"s_cbranch_vccz {dn}")
        for k in range(n):
            e(f"v_cmp_ne_u32 {sm[k]}, 0, {temps[k]}")
        if backoff:
            sk = self.label("Lnb")
            e("s_bcnt1_i32_b64 s30, vcc")
            e(f"s_cmp_le_u32 s30, {backoff[0]}")
            e(f"s_cbranch_scc1 {sk}")
            e(f"s_sleep {backoff[1]}")
            e(f"{sk}:")
        e(f"s_cmp_gt_u32 s7, 0x{POLL_MAX:x}")
        e(f"s_cbranch_scc0 {lp}")
        e(f"{dn}:")
        if unpack:
            for regs, va, off in loads:
                self.unpack4(regs)

    def div448(self, dst, src, a, b):
        e = self.e
        e(f"v_mov_b32 {a}, {src}")
        e(f"v_mul_f32 {dst}, 0x{F_INV448:08x}, {a}")
        e(f"v_mov_b32 {b}, 0x{F_448:08x}")
        e(f"v_fma_f32 {a}, -{dst}, {b}, {a}")
        e(f"v_mov_b32 {b}, 0x{F_INV448:08x}")
        e(f"v_fma_f32 {dst}, {a}, {b}, {dst}")

    def ln_stats(self, f, vm, t):
        e = self.e
        e(f"v_add_f32 {t[0]}, {f[0]}, {f[1]}")
        e(f"v_add_f32 {t[1]}, {f[2]}, {f[3]}")
        e(f"v_add_f32 {t[2]}, {f[4]}, {f[5]}")
        e(f"v_add_f32 {t[3]}, {f[6]}, {f[7]}")
        e(f"v_add_f32 {t[0]}, {t[0]}, {t[1]}")
        e(f"v_add_f32 {t[2]}, {t[2]}, {t[3]}")
        e(f"v_add_f32 {t[0]}, {t[0]}, {t[2]}")
        self.wave_sum1(t[0])
        e(f"v_readlane_b32 s30, {t[0]}, 63")
        e("s_nop 1")
        self.div448(t[4], "s30", t[3], t[5])
        e(f"v_sub_f32 {t[0]}, {f[0]}, {t[4]}")
        e(f"v_mul_f32 {t[1]}, {t[0]}, {t[0]}")
        for i in range(1, 8):
            e(f"v_sub_f32 {t[0]}, {f[i]}, {t[4]}")
            e(f"v_fma_f32 {t[1]}, {t[0]}, {t[0]}, {t[1]}")
        e(f"v_mul_f32 {t[1]}, {t[1]}, {vm}")
        self.wave_sum1(t[1])
        e(f"v_readlane_b32 s30, {t[1]}, 63")
        e("s_nop 1")
        self.div448(t[2], "s30", t[3], t[5])
        self.rne(t[0], t[4])
        self.rne(t[2], t[2])
        e(f"v_add_f32 {t[2]}, 0x{F_EPS:08x}, {t[2]}")
        self.rne(t[2], t[2])
        e(f"v_sqrt_f32 {t[1]}, {t[2]}")
        e("s_nop 0")
        self.rne(t[1], t[1])
        e(f"v_rcp_f32 {t[2]}, {t[1]}")
        e("s_nop 0")

    def ln_apply(self, dst, x, t, a, b):
        e = self.e
        e(f"v_sub_f32 {a}, {x}, {t[0]}")
        self.rne(a, a)
        e(f"v_mul_f32 {b}, {a}, {t[2]}")
        e(f"v_fma_f32 {a}, -{b}, {t[1]}, {a}")
        e(f"v_fma_f32 {b}, {a}, {t[2]}, {b}")
        self.rne(dst, b)

    def unpack8(self, f, src):
        for i in range(4):
            self.e(f"v_lshlrev_b32 {f[2*i]}, 16, {src[i]}")
            self.e(f"v_and_b32 {f[2*i+1]}, 0xffff0000, {src[i]}")

    def xsum(self, regs, tmps, op="v_add_f32"):
        e = self.e
        for sw in ("v_permlane16_swap_b32", "v_permlane32_swap_b32"):
            for r, t in zip(regs, tmps):
                e(f"v_mov_b32 {t}, {r}")
            if len(regs) < 3:
                e("s_nop 1")
            for r, t in zip(regs, tmps):
                e(f"{sw} {r}, {t}")
            if len(regs) < 3:
                e("s_nop 1")
            for r, t in zip(regs, tmps):
                e(f"{op} {r}, {r}, {t}")

    def rowscatter4(self, r):
        e = self.e
        e("s_nop 1")
        e(f"v_permlane16_swap_b32 {r[0]}, {r[1]}")
        e(f"v_permlane16_swap_b32 {r[2]}, {r[3]}")
        e("s_nop 0")
        e(f"v_add_f32 {r[0]}, {r[0]}, {r[1]}")
        e(f"v_add_f32 {r[2]}, {r[2]}, {r[3]}")
        e("s_nop 1")
        e(f"v_permlane32_swap_b32 {r[0]}, {r[2]}")
        e("s_nop 0")
        e(f"v_add_f32 {r[0]}, {r[0]}, {r[2]}")

    def tag(self):
        self.e("s_mul_i32 s6, s6, 0x9E3779B1")
        self.e("s_add_u32 s6, s6, 0x7F4A7C15")
        self.e("s_or_b32 s6, s6, 1")
        self.e("s_sub_u32 s57, 0, s6")

    def srd(self, base, p, size):
        e = self.e
        e(f"s_mov_b32 s{base}, s{p}")
        e(f"s_mov_b32 s{base+1}, s{p+1}")
        e(f"s_mov_b32 s{base+2}, 0x{size:x}")
        e(f"s_mov_b32 s{base+3}, 0x20000")

    def consts(self):
        e = self.e
        e("s_mov_b32 s58, 0x07060501")
        e("s_mov_b32 s59, 0x07060502")
        e("s_mov_b32 s60, 0x07060503")
        e("s_mov_b32 s61, 0x0c04000c")
        e("s_mov_b32 s62, 0x04020100")
        e(f"s_mov_b32 s63, 0x{CEXP:08x}")

    def stream_load(self, i):
        n, half = (i % 64) >> 1, i & 1
        off = n * 2048 + half * 256
        hi, lo = off & ~4095, off & 4095
        if self.cur_so != hi:
            self.e(f"s_add_u32 s29, s28, {hi}")
            self.cur_so = hi
        slot = (i % self.NS) * 4
        srd, vo = ("s[8:11]", "v1") if i < 64 else ("s[12:15]", "v2")
        self.e(f"buffer_load_dwordx4 a[{slot}:{slot+3}], {vo}, {srd}, s29 offen offset:{lo} nt")

    def slot(self, i):
        s = (i % self.NS) * 4
        return f"a[{s}:{s+3}]"

    def build(self):
        e, c = self.e, self.c
        NS, W0, W = self.NS, self.W0, self.W
        W00 = self.W00
        self.W01 = min(self.W01, NS)
        self.cur_so = None
        if self.stamps:
            e("s_memrealtime s[96:97]")
            for k in range(16):
                e(f"s_mov_b32 s{80+k}, 0")
        c("workgroup = (kv head g = id&7, key chunk = id>>3); 8 waves, 128 keys each; extra workgroups leave at once")
        e("s_cmp_ge_u32 s2, 256")
        e("s_cbranch_scc1 L_exit")
        e("s_load_dwordx16 s[32:47], s[0:1], 0")
        e("s_load_dwordx8 s[48:55], s[0:1], 64")
        e("v_lshrrev_b32 v3, 6, v0")
        e("v_and_b32 v0, 63, v0")
        e("s_and_b32 s4, s2, 7")
        e("v_readfirstlane_b32 s3, v3")
        e("s_lshr_b32 s5, s2, 3")
        c("K lane offset v1 = ((l>>2)&3)*512 + (l>>4)*64 + (l&3)*16 ; V lane offset v2 = (l>>4)*512 + (l&15)*16")
        e("v_bfe_u32 v1, v0, 2, 2")
        e("v_lshlrev_b32 v1, 9, v1")
        e("v_lshrrev_b32 v4, 4, v0")
        e("v_lshl_add_u32 v1, v4, 6, v1")
        e("v_and_b32 v5, 3, v0")
        e("v_lshl_add_u32 v1, v5, 4, v1")
        e("v_and_b32 v5, 15, v0")
        e("v_lshlrev_b32 v2, 4, v5")
        e("v_lshl_add_u32 v2, v4, 9, v2")
        e("s_lshl_b32 s28, s4, 24")
        e("s_lshl_b32 s30, s5, 19")
        e("s_add_u32 s28, s28, s30")
        e("s_lshl_b32 s30, s3, 16")
        e("s_add_u32 s28, s28, s30")
        e("s_cmp_lg_u32 s3, 0")
        e("s_waitcnt lgkmcnt(0)")
        self.srd(8, 34, 0x8000000)
        e("s_cbranch_scc1 L_pref")
        if self.x_noq:
            e("s_branch L_pref")
        c("---- wave 0: partial q for 64 columns x 112 rows of wq, publish, gather the whole q of this head pair ----")
        self.srd(20, 32, 896)
        self.srd(24, 38, 3670016)
        e("v_lshlrev_b32 v6, 4, v0")
        e("v_lshrrev_b32 v7, 3, v0")
        e("v_lshlrev_b32 v3, 13, v7")
        e("v_and_b32 v5, 7, v0")
        e("v_lshl_add_u32 v3, v5, 4, v3")
        e("s_and_b32 s72, s5, 3")
        e("s_lshr_b32 s73, s5, 2")
        e(f"s_mul_i32 s74, s72, {112*8192}")
        e("s_lshl_b32 s30, s4, 10")
        e("s_add_u32 s74, s74, s30")
        e("s_lshl_b32 s30, s73, 7")
        e("s_add_u32 s74, s74, s30")
        e("buffer_load_dwordx4 v[16:19], v6, s[20:23], 0 offen")
        for i in range(14):
            e(f"s_add_u32 s30, s74, {i*65536}")
            e(f"buffer_load_dwordx4 v[{32+4*i}:{35+4*i}], v3, s[24:27], s30 offen{self.wqfl}")
        e("s_load_dword s6, s[54:55], 0")
        for i in range(W00):
            self.stream_load(i)
        self.consts()
        self.stamp(14, "s96")
        e("v_cmp_gt_u32 vcc, 56, v0")
        e("v_mov_b32 v22, 0")
        e("v_mov_b32 v23, 1.0")
        e("v_cndmask_b32 v22, v22, v23, vcc")
        e(f"s_waitcnt vmcnt({14 + W00})")
        f = V(8, 8)
        self.unpack8(f, V(16, 4))
        self.ln_stats(f, "v22", V(88, 6))
        for j in range(8):
            self.ln_apply(f[j], f[j], V(88, 6), "v94", "v95")
        e("s_mov_b32 s30, 0x07060302")
        for j in range(4):
            e(f"v_perm_b32 v{4+j}, v{9+2*j}, v{8+2*j}, s30")
        e("v_lshlrev_b32 v24, 4, v0")
        e(f"v_add_u32 v24, {LDS_XN}, v24")
        e("ds_write_b128 v24, v[4:7]")
        e("s_mul_i32 s30, s72, 224")
        e(f"s_add_u32 s30, s30, {LDS_XN}")
        e("v_lshrrev_b32 v3, 3, v0")
        e("v_lshlrev_b32 v3, 1, v3")
        e("v_add_u32 v3, s30, v3")
        e("s_waitcnt lgkmcnt(0)")
        for i in range(14):
            e(f"ds_read_u16 v{16+i}, v3 offset:{16*i}")
        self.tag()
        for i in range(14):
            e(f"s_waitcnt vmcnt({13 - i + W00}) lgkmcnt({13 - i})")
            e(f"v_lshlrev_b32 v{30+(i&1)}, 16, v{16+i}")
            for d in range(4):
                w = 32 + 4 * i + d
                e(f"v_dot2_f32_bf16 v{8+2*d}, v{w}, v{16+i}, {'0' if i == 0 else 'v%d' % (8+2*d)}")
                e(f"v_dot2_f32_bf16 v{9+2*d}, v{w}, v{30+(i&1)}, {'0' if i == 0 else 'v%d' % (9+2*d)}")
        e("s_nop 2")
        for j in range(8):
            e(f"v_add_f32_dpp v{8+j}, v{8+j}, v{8+j} row_ror:8 row_mask:0xf bank_mask:0xf")
        self.xsum(V(8, 8), V(16, 8))
        for j in range(8):
            e(f"v_add_u32 v{8+j}, 0x80, v{8+j}")
        e("s_mov_b32 s64, 0xff00ff00")
        e("s_mov_b32 s65, 0xff00ff00")
        for j in range(4):
            e(f"v_cndmask_b32 v{8+j}, v{8+j}, v{12+j}, s[64:65]")
        self.pack4(V(32, 4), V(8, 4))
        e("s_lshl_b32 s30, s4, 13")
        e(f"s_add_u32 s75, s30, {WS_QX}")
        e("s_lshl_b32 s30, s72, 11")
        e("s_lshl_b32 s31, s73, 8")
        e("s_add_u32 s30, s30, s31")
        e("s_add_u32 s30, s30, s75")
        e("v_lshlrev_b32 v4, 4, v0")
        e("v_add_u32 v4, s30, v4")
        self.srd(16, 54, WS_SIZE)
        e("s_mov_b64 exec, 0xffff")
        e("buffer_store_dwordx4 v[32:35], v4, s[16:19], 0 offen sc1")
        e("s_mov_b64 exec, -1")
        self.stamp(1)
        self.srd(12, 36, 0x8000000)
        for i in range(W00, self.W01):
            self.stream_load(i)
        e("v_lshlrev_b32 v3, 4, v0")
        e("v_add_u32 v4, s75, v3")
        e("v_add_u32 v5, 4096, v4")
        loads = []
        for b in range(4):
            for i in range(2):
                loads.append((V(40 + 8 * b + 4 * i, 4), "v4" if b < 2 else "v5", (b & 1) * 2048 + i * 1024))
        self.poll(loads, 64, V(72, 8), "v95")
        self.stamp(13)
        for b in range(4):
            for i in range(2):
                for j in range(3):
                    e(f"v_and_b32 v{40+8*b+4*i+j}, 0xffffff00, v{40+8*b+4*i+j}")
        for k in range(8):
            e(f"v_add_f32 v{40+k}, v{40+k}, v{48+k}")
            e(f"v_add_f32 v{56+k}, v{56+k}, v{64+k}")
        for k in range(8):
            e(f"v_add_f32 v{40+k}, v{40+k}, v{56+k}")
        for k in range(4):
            e(f"v_cvt_pk_bf16_f32 v{48+k}, v{40+2*k}, v{41+2*k}")
        e("v_lshrrev_b32 v3, 4, v0")
        e("v_lshlrev_b32 v3, 7, v3")
        e("v_and_b32 v4, 7, v0")
        e("v_lshl_add_u32 v3, v4, 4, v3")
        e("v_bfe_u32 v4, v0, 3, 1")
        e("v_lshl_add_u32 v3, v4, 3, v3")
        e(f"v_add_u32 v3, {LDS_Q}, v3")
        e("ds_write_b64 v3, v[48:49]")
        e("ds_write_b64 v3, v[50:51] offset:512")
        for i in range(self.W01, NS):
            self.stream_load(i)
        e("s_branch L_qready")
        c("---- waves 1..7: paced prefetch of the first K tiles ----")
        e("L_pref:")
        self.cur_so = None
        for i in range(W0):
            self.stream_load(i)
        e("s_load_dword s6, s[54:55], 0")
        self.srd(12, 36, 0x8000000)
        self.srd(16, 54, WS_SIZE)
        self.consts()
        self.stamp(14, "s96")
        for i in range(W0, NS):
            e(f"s_waitcnt vmcnt({W - 1})")
            self.stream_load(i)
        e("s_waitcnt lgkmcnt(0)")
        self.tag()
        e("L_qready:")
        c("PV masks v64..v67: lane j0 = l&7 keeps bf16 slot j0 of the A operand")
        e("v_and_b32 v5, 1, v0")
        e("v_mov_b32 v6, 0xffff")
        e("v_lshlrev_b32 v5, 4, v5")
        e("v_lshlrev_b32 v6, v5, v6")
        e("v_bfe_u32 v7, v0, 1, 2")
        for jj in range(4):
            e(f"v_cmp_eq_u32 vcc, {jj}, v7")
            e("s_nop 1")
            e(f"v_cndmask_b32 v{64+jj}, 0, v6, vcc")
        e("v_mov_b32 v84, 0xff800000")
        e("v_bfe_u32 v3, v0, 3, 1")
        e("v_lshlrev_b32 v3, 9, v3")
        e("v_lshrrev_b32 v4, 4, v0")
        e("v_lshl_add_u32 v3, v4, 6, v3")
        e("v_and_b32 v5, 3, v0")
        e("v_lshl_add_u32 v3, v5, 4, v3")
        e(f"v_add_u32 v3, {LDS_Q}, v3")
        e("s_waitcnt lgkmcnt(0)")
        e("s_barrier")
        self.stamp(2)
        e("ds_read_b128 v[8:11], v3")
        e("ds_read_b128 v[12:15], v3 offset:256")
        c("epilogue addresses: v88 = per-wave O write, v89 = (m,l) write, v90 = O read, v91 = (m,l) read, v92 = partial block")
        e("v_lshrrev_b32 v4, 5, v0")
        e("v_lshlrev_b32 v88, 10, v4")
        e("v_and_b32 v5, 15, v0")
        e("v_lshl_add_u32 v88, v5, 5, v88")
        e("v_bfe_u32 v5, v0, 4, 1")
        e("v_lshl_add_u32 v88, v5, 4, v88")
        e("s_lshl_b32 s30, s3, 11")
        e(f"s_add_u32 s30, s30, {LDS_O}")
        e("v_add_u32 v88, s30, v88")
        e("v_bfe_u32 v5, v0, 3, 1")
        e("v_lshlrev_b32 v89, 6, v5")
        e("s_lshl_b32 s30, s3, 3")
        e(f"s_add_u32 s30, s30, {LDS_ML}")
        e("v_add_u32 v89, s30, v89")
        e("v_lshlrev_b32 v3, 4, v0")
        e("s_lshl_b32 s30, s3, 10")
        e(f"s_add_u32 s30, s30, {LDS_O}")
        e("v_add_u32 v90, s30, v3")
        e("s_lshl_b32 s30, s3, 6")
        e(f"s_add_u32 s30, s30, {LDS_ML}")
        e("v_mov_b32 v91, s30")
        e("s_lshl_b32 s30, s4, 1")
        e("s_add_u32 s30, s30, s3")
        e("s_lshl_b32 s30, s30, 5")
        e("s_add_u32 s30, s30, s5")
        e(f"s_mul_i32 s30, s30, {PO_BLK}")
        e(f"s_add_u32 s30, s30, {WS_PO}")
        e("v_add_u32 v92, s30, v3")
        c("roles (s68: 0 none, 1 = output projection, 2 = FFN; s69 = index): ids with g in {4,6} / g in {0,2}")
        lab = self.label("Lrole")
        e("s_mov_b32 s68, 0")
        e("s_mov_b32 s69, 0")
        e("s_and_b32 s30, s4, 1")
        e("s_cmp_lg_u32 s30, 0")
        e(f"s_cbranch_scc1 {lab}")
        e("s_lshr_b32 s30, s4, 1")
        e("s_cmp_ge_u32 s30, 2")
        e(f"s_cbranch_scc1 {lab}a")
        e("s_cmp_ge_u32 s5, 28")
        e(f"s_cbranch_scc1 {lab}")
        e("s_mov_b32 s68, 2")
        e("s_mul_i32 s69, s30, 28")
        e("s_add_u32 s69, s69, s5")
        e(f"s_branch {lab}")
        e(f"{lab}a:")
        e("s_mov_b32 s68, 1")
        e("s_sub_u32 s69, s30, 2")
        e("s_lshl_b32 s69, s69, 5")
        e("s_add_u32 s69, s69, s5")
        e(f"{lab}:")
        e("s_waitcnt lgkmcnt(0)")

        c("================= K phase: scores of 4 keys x 2 heads per pair of MFMAs =================")
        issued = NS

        def post_k(n):
            d = 16 + (n % 4) * 4
            t = 32 + n
            e(f"v_mov_b32_dpp v{t}, v{d} quad_perm:[0,0,0,0] row_mask:0xf bank_mask:0xf")
            e(f"v_add_f32_dpp v{t}, v{d+1}, v{t} quad_perm:[1,1,1,1] row_mask:0xf bank_mask:0xf")
            e(f"v_add_f32_dpp v{t}, v{d+2}, v{t} quad_perm:[2,2,2,2] row_mask:0xf bank_mask:0xf")
            e(f"v_add_f32_dpp v{t}, v{d+3}, v{t} quad_perm:[3,3,3,3] row_mask:0xf bank_mask:0xf")
            e(f"v_max_f32 v84, v84, v{t}")

        for n in range(32):
            i = 2 * n
            e(f"s_waitcnt vmcnt({issued - i - 2})")
            d = 16 + (n % 4) * 4
            e(f"v_mfma_f32_16x16x32_bf16 v[{d}:{d+3}], {self.slot(i)}, v[8:11], 0")
            e(f"v_mfma_f32_16x16x32_bf16 v[{d}:{d+3}], {self.slot(i+1)}, v[12:15], v[{d}:{d+3}]")
            for k in range(2):
                if issued < 128:
                    self.stream_load(issued)
                    issued += 1
            if n >= 2:
                post_k(n - 2)
        e("s_nop 7")
        post_k(30)
        post_k(31)
        self.stamp(3)
        c("softmax over this wave's 128 keys (scores rounded to bf16 first, true max of the wave subtracted)")
        self.xsum(["v84"], ["v85"], op="v_max_f32")
        self.rne("v84", "v84")
        e("v_mov_b32 v86, 0")
        e("v_mov_b32 v87, 0")
        for m in range(16):
            a, b = 32 + 2 * m, 33 + 2 * m
            e(f"v_cvt_pk_bf16_f32 v85, v{a}, v{b}")
            e(f"v_lshlrev_b32 v{a}, 16, v85")
            e(f"v_and_b32 v{b}, 0xffff0000, v85")
            e(f"v_sub_f32 v{a}, v{a}, v84")
            e(f"v_sub_f32 v{b}, v{b}, v84")
            e(f"v_mul_f32 v{a}, s63, v{a}")
            e(f"v_mul_f32 v{b}, s63, v{b}")
            e(f"v_exp_f32 v{a}, v{a}")
            e(f"v_exp_f32 v{b}, v{b}")
            e("s_nop 0")
            e(f"v_add_f32 v86, v86, v{a}")
            e(f"v_add_f32 v87, v87, v{b}")
        e("v_add_f32 v86, v86, v87")
        self.xsum(["v86"], ["v85"])
        e("v_mov_b32 v94, v84")
        e("v_mov_b32 v95, v86")
        e("s_mov_b64 exec, 0x101")
        e("ds_write_b64 v89, v[94:95]")
        e("s_mov_b64 exec, -1")

        c("================= V phase =================")

        def build_a(n):
            a = 68 + (n % 2) * 4
            e(f"v_cvt_pk_bf16_f32 v85, v{32+n}, v{32+n}")
            for jj in range(4):
                e(f"v_and_b32 v{a+jj}, v85, v{64+jj}")

        build_a(0)
        for n in range(32):
            i = 64 + 2 * n
            if n + 1 < 32:
                build_a(n + 1)
            e(f"s_waitcnt vmcnt({issued - i - 2})")
            a = 68 + (n % 2) * 4
            c0 = "0" if n == 0 else "v[76:79]"
            c1 = "0" if n == 0 else "v[80:83]"
            e(f"v_mfma_f32_16x16x32_bf16 v[76:79], v[{a}:{a+3}], {self.slot(i)}, {c0}")
            e(f"v_mfma_f32_16x16x32_bf16 v[80:83], v[{a}:{a+3}], {self.slot(i+1)}, {c1}")
            for k in range(2):
                if issued < 128:
                    self.stream_load(issued)
                    issued += 1
        self.stamp(4)
        e("s_nop 7")
        e("ds_write_b128 v88, v[76:79]")
        e("ds_write_b128 v88, v[80:83] offset:512")
        e("s_waitcnt lgkmcnt(0)")
        e("s_barrier")
        c("---- waves 0,1: merge the 8 waves of head 2g+w and publish the partial ----")
        e("s_cmp_gt_u32 s3, 1")
        e("s_cbranch_scc1 L_pub_done")
        for k in range(4):
            e(f"ds_read_b128 v[{16+4*k}:{19+4*k}], v91 offset:{16*k}")
        for wv in range(8):
            e(f"ds_read_b128 v[{32+4*wv}:{35+4*wv}], v90 offset:{2048*wv}")
        e("v_mov_b32 v10, 0")
        e("s_waitcnt lgkmcnt(8)")
        e("v_max3_f32 v8, v16, v18, v20")
        e("v_max3_f32 v9, v22, v24, v26")
        e("v_max3_f32 v8, v8, v28, v30")
        e("v_max_f32 v8, v8, v9")
        for wv in range(8):
            e(f"v_sub_f32 v{16+2*wv}, v{16+2*wv}, v8")
        for wv in range(8):
            e(f"v_mul_f32 v{16+2*wv}, s63, v{16+2*wv}")
        for wv in range(8):
            e(f"v_exp_f32 v{16+2*wv}, v{16+2*wv}")
        e("s_nop 0")
        e("v_mul_f32 v9, v16, v17")
        for wv in range(1, 8):
            e(f"v_fma_f32 v9, v{16+2*wv}, v{17+2*wv}, v9")
        self.pack4(V(68, 4), ["v9", "v10", "v10", "v8"])
        e("s_waitcnt lgkmcnt(0)")
        for j in (0, 2):
            e(f"v_pk_mul_f32 v[{12+j}:{13+j}], v[16:17], v[{32+j}:{33+j}] op_sel_hi:[0,1]")
        for wv in range(1, 8):
            for j in (0, 2):
                e(f"v_pk_fma_f32 v[{12+j}:{13+j}], v[{16+2*wv}:{17+2*wv}], v[{32+4*wv+j}:{33+4*wv+j}], v[{12+j}:{13+j}] op_sel_hi:[0,1,1]")
        self.pack4(V(64, 4), V(12, 4))
        e("buffer_store_dwordx4 v[64:67], v92, s[16:19], 0 offen sc1")
        e("s_mov_b64 exec, 1")
        e("buffer_store_dwordx4 v[68:71], v92, s[16:19], 0 offen offset:1024 sc1")
        e("s_mov_b64 exec, -1")
        e("L_pub_done:")
        self.stamp(5)
        e("s_cmp_eq_u32 s68, 0")
        e("s_cbranch_scc1 L_end")
        if self.x_norole:
            e("s_branch L_end")
        self.role_dma()
        e("s_cmp_eq_u32 s68, 2")
        e("s_cbranch_scc1 L_s3")
        if self.s2kflag:
            self.s2k()
        else:
            self.s2()
        e("s_branch L_end")
        e("L_s3:")
        self.s3()
        e("L_end:")
        self.stamp_flush()
        e("L_exit:")
        e("s_endpgm")

    def dma_load(self, text):
        if self.dma_w and self.dma_n >= self.dma_w:
            self.e(f"s_waitcnt vmcnt({self.dma_w - 1})")
        self.dma_n += 1
        self.e(text)

    def role_dma(self):
        e = self.e
        self.dma_n = 0
        done = self.label("Ldma_done")
        s3l = self.label("Ldma_s3")
        e("s_lshl_b32 s30, s3, 6")
        e("v_add_u32 v10, s30, v0")
        e("s_lshl_b32 s71, s3, 10")
        e("s_cmp_eq_u32 s68, 2")
        e(f"s_cbranch_scc1 {s3l}")
        self.c("wo rows h*256.., 112 columns: piece i = t*512 + tid, row = i/14")
        self.srd(20, 40, 3670016)
        e("s_lshr_b32 s30, s69, 2")
        e(f"s_mul_i32 s30, s30, {256 * 896}")
        e("s_and_b32 s31, s69, 3")
        e("s_mul_i32 s31, s31, 224")
        e("s_add_u32 s70, s30, s31")
        e("s_movk_i32 s31, 18725")
        for t in range(7):
            e(f"v_add_u32 v11, {t*512}, v10")
            e("v_mul_lo_u32 v12, v11, s31")
            e("v_lshrrev_b32 v12, 18, v12")
            e("v_mul_u32_u24 v13, 14, v12")
            e("v_sub_u32 v13, v11, v13")
            e("v_mul_u32_u24 v12, 0x380, v12")
            e("v_lshl_add_u32 v12, v13, 4, v12")
            e(f"s_add_u32 m0, s71, {LDS_W + t*8192}")
            e("s_nop 0")
            self.dma_load("buffer_load_dwordx4 v12, s[20:23], s70 offen nt lds")
        e(f"s_branch {done}")
        e(f"{s3l}:")
        self.dma_n = 0
        self.c("32 columns of w_gate and w_up (448 rows x 64 B each), 32 rows of w_down")
        e("v_lshrrev_b32 v11, 2, v10")
        e("v_mul_u32_u24 v11, 0xe00, v11")
        e("v_and_b32 v12, 3, v10")
        e("v_lshl_add_u32 v11, v12, 4, v11")
        e("s_lshl_b32 s70, s69, 6")
        for mtx, p in ((0, 44), (1, 46)):
            self.srd(20, p, 1605632)
            for t in range(4):
                lab = None
                if t == 3:
                    lab = self.label("Lskip")
                    e("s_cmp_gt_u32 s3, 3")
                    e(f"s_cbranch_scc1 {lab}")
                e(f"s_add_u32 s30, s70, {t*128*3584}")
                e(f"s_add_u32 m0, s71, {LDS_W + mtx*28672 + t*8192}")
                e("s_nop 0")
                self.dma_load("buffer_load_dwordx4 v11, s[20:23], s30 offen nt lds")
                if lab:
                    e(f"{lab}:")
        self.srd(20, 48, 1605632)
        e("v_lshlrev_b32 v11, 4, v10")
        e("s_mul_i32 s70, s69, 28672")
        for t in range(4):
            lab = None
            if t == 3:
                lab = self.label("Lskip")
                e("s_cmp_gt_u32 s3, 3")
                e(f"s_cbranch_scc1 {lab}")
            e(f"s_add_u32 s30, s70, {t*8192}")
            e(f"s_add_u32 m0, s71, {LDS_W + 57344 + t*8192}")
            e("s_nop 0")
            self.dma_load("buffer_load_dwordx4 v11, s[20:23], s30 offen nt lds")
            if lab:
                e(f"{lab}:")
        e(f"{done}:")

    def s2(self):
        e = self.e
        e("s_lshr_b32 s72, s69, 2")
        e(f"s_mul_i32 s30, s72, {32 * PO_BLK}")
        e(f"s_add_u32 s30, s30, {WS_PO}")
        e("v_and_b32 v7, 31, v0")
        e(f"v_mul_u32_u24 v7, {PO_BLK}, v7")
        e("v_add_u32 v7, s30, v7")
        e(f"s_mul_i32 s31, s3, {4 * PO_BLK}")
        e("s_add_u32 s30, s30, s31")
        e("v_lshlrev_b32 v5, 4, v0")
        e("v_add_u32 v6, s30, v5")
        e(f"v_add_u32 v9, {2 * PO_BLK}, v6")
        self.c("weight operand address: LDS_W + (32s + 8g + r)*224 + w*32 + (l&3)*8")
        e("v_bfe_u32 v3, v0, 2, 2")
        e("v_lshrrev_b32 v4, 4, v0")
        e("v_lshl_add_u32 v3, v4, 3, v3")
        e("v_mul_u32_u24 v3, 224, v3")
        e("v_and_b32 v11, 3, v0")
        e("v_lshl_add_u32 v3, v11, 3, v3")
        e("s_lshl_b32 s30, s3, 5")
        e(f"s_add_u32 s30, s30, {LDS_W}")
        e("v_add_u32 v3, s30, v3")
        e("s_lshl_b32 s30, s3, 10")
        e(f"s_add_u32 s31, s30, {LDS_O}")
        e("v_add_u32 v72, s31, v5")
        self.c("partial read: lane l takes granule 8*((l&15)>>1) + 2*(l>>4) + (l&1)")
        e("v_bfe_u32 v73, v0, 1, 3")
        e("v_lshlrev_b32 v73, 7, v73")
        e("v_lshl_add_u32 v73, v4, 5, v73")
        e("v_and_b32 v11, 1, v0")
        e("v_lshl_add_u32 v73, v11, 4, v73")
        e(f"v_add_u32 v73, {LDS_O}, v73")
        e("s_and_b32 s30, s69, 3")
        e("s_mul_i32 s30, s30, 448")
        e("s_lshl_b32 s31, s3, 6")
        e("s_add_u32 s30, s30, s31")
        e(f"s_mul_i32 s31, s72, {ROW}")
        e("s_add_u32 s30, s30, s31")
        e(f"s_add_u32 s30, s30, {WS_Y}")
        e("v_lshlrev_b32 v77, 2, v0")
        e("v_add_u32 v77, s30, v77")
        self.pack_dw_consts("v78", "v79", 66)
        e("s_lshl_b32 s70, s3, 2")
        e("s_add_u32 s71, s70, 1")
        e("s_add_u32 s73, s70, 2")
        e("s_add_u32 s78, s70, 3")
        e("s_waitcnt vmcnt(0)")
        e("s_barrier")
        e("s_cmp_gt_u32 s3, 6")
        e("s_cbranch_scc1 L_s2_now")
        for s in range(8):
            e(f"ds_read_b64_tr_b16 a[{4*s}:{4*s+1}], v3 offset:{s*7168}")
            e(f"ds_read_b64_tr_b16 a[{4*s+2}:{4*s+3}], v3 offset:{s*7168 + 896}")
        e("L_s2_now:")
        self.stamp(12)
        self.poll([(V(48, 4), "v7", 1024), (V(32, 4), "v6", 0), (V(36, 4), "v6", PO_BLK), (V(40, 4), "v9", 0),
                   (V(44, 4), "v9", PO_BLK)], 32, V(52, 5), "v95", unpack=False, backoff=self.bo2)
        self.stamp(15, "s7")
        self.stamp(6)
        self.unpack4(V(48, 4))
        e("v_mov_b32 v9, v51")
        self.unpack4(V(32, 4))
        e("v_max_f32_dpp v9, v9, v9 quad_perm:[1,0,3,2] row_mask:0xf bank_mask:0xf")
        self.unpack4(V(36, 4))
        e("v_max_f32_dpp v9, v9, v9 quad_perm:[2,3,0,1] row_mask:0xf bank_mask:0xf")
        self.unpack4(V(40, 4))
        e("v_max_f32_dpp v9, v9, v9 row_half_mirror row_mask:0xf bank_mask:0xf")
        self.unpack4(V(44, 4))
        e("v_max_f32_dpp v9, v9, v9 row_mirror row_mask:0xf bank_mask:0xf")
        e("s_nop 0")
        e("v_mov_b32 v10, v9")
        e("s_nop 1")
        e("v_permlane16_swap_b32 v9, v10")
        e("s_nop 1")
        e("v_max_f32 v9, v9, v10")
        e("v_sub_f32 v10, v51, v9")
        e("v_mul_f32 v10, s63, v10")
        e("v_exp_f32 v10, v10")
        e("s_nop 0")
        e("v_mul_f32 v11, v10, v48")
        e("v_readlane_b32 s74, v10, s70")
        e("v_readlane_b32 s75, v10, s71")
        e("v_readlane_b32 s76, v10, s73")
        e("v_readlane_b32 s77, v10, s78")
        e("v_add_f32_dpp v11, v11, v11 quad_perm:[1,0,3,2] row_mask:0xf bank_mask:0xf")
        for j in (0, 2):
            e(f"v_pk_mul_f32 v[{12+j}:{13+j}], s[74:75], v[{32+j}:{33+j}] op_sel_hi:[0,1]")
        for k in range(1, 4):
            sp = (74 + k) & ~1
            hi = (74 + k) & 1
            for j in (0, 2):
                e(f"v_pk_fma_f32 v[{12+j}:{13+j}], s[{sp}:{sp+1}], v[{32+4*k+j}:{33+4*k+j}], v[{12+j}:{13+j}] op_sel:[{hi},0,0] op_sel_hi:[{hi},1,1]")
        e("ds_write_b128 v72, v[12:15]")
        e("v_add_f32_dpp v11, v11, v11 quad_perm:[2,3,0,1] row_mask:0xf bank_mask:0xf")
        e("s_waitcnt lgkmcnt(0)")
        e("s_barrier")
        e("s_cmp_gt_u32 s3, 6")
        e("s_cbranch_scc1 L_end")
        for wv in range(8):
            e(f"ds_read_b128 v[{32+4*wv}:{35+4*wv}], v73 offset:{1024*wv}")
        e("v_add_f32_dpp v11, v11, v11 row_half_mirror row_mask:0xf bank_mask:0xf")
        e("s_nop 1")
        e("v_add_f32_dpp v11, v11, v11 row_mirror row_mask:0xf bank_mask:0xf")
        e("s_nop 0")
        e("v_mov_b32 v10, v11")
        e("s_nop 1")
        e("v_permlane16_swap_b32 v11, v10")
        e("s_nop 1")
        e("v_add_f32 v11, v11, v10")
        e("v_rcp_f32 v10, v11")
        for pair in range(4):
            e(f"s_waitcnt lgkmcnt({6 - 2*pair})")
            for j in (0, 2):
                e(f"v_pk_add_f32 v[{32+8*pair+j}:{33+8*pair+j}], v[{32+8*pair+j}:{33+8*pair+j}], v[{36+8*pair+j}:{37+8*pair+j}]")
        for j in (0, 2):
            e(f"v_pk_add_f32 v[{32+j}:{33+j}], v[{32+j}:{33+j}], v[{40+j}:{41+j}]")
            e(f"v_pk_add_f32 v[{48+j}:{49+j}], v[{48+j}:{49+j}], v[{56+j}:{57+j}]")
        e("v_fma_f32 v9, -v10, v11, 1.0")
        e("v_fma_f32 v10, v9, v10, v10")
        for j in (0, 2):
            e(f"v_pk_add_f32 v[{32+j}:{33+j}], v[{32+j}:{33+j}], v[{48+j}:{49+j}]")
        for j in (0, 2):
            e(f"v_pk_mul_f32 v[{32+j}:{33+j}], v[10:11], v[{32+j}:{33+j}] op_sel_hi:[0,1]")
        e("v_cvt_pk_bf16_f32 v12, v32, v33")
        e("v_cvt_pk_bf16_f32 v13, v34, v35")
        e("s_nop 1")

        def amov(s):
            b = 40 + 4 * (s % 2)
            e(f"v_mov_b32_dpp v{b}, v12 row_newbcast:{2*s} row_mask:0xf bank_mask:0xf")
            e(f"v_mov_b32_dpp v{b+1}, v13 row_newbcast:{2*s} row_mask:0xf bank_mask:0xf")
            e(f"v_mov_b32_dpp v{b+2}, v12 row_newbcast:{2*s+1} row_mask:0xf bank_mask:0xf")
            e(f"v_mov_b32_dpp v{b+3}, v13 row_newbcast:{2*s+1} row_mask:0xf bank_mask:0xf")

        amov(0)
        for s in range(8):
            if s < 7:
                amov(s + 1)
            else:
                e("s_nop 0")
            b = 40 + 4 * (s % 2)
            cc = "0" if s == 0 else "v[16:19]"
            e(f"v_mfma_f32_16x16x32_bf16 v[16:19], v[{b}:{b+3}], a[{4*s}:{4*s+3}], {cc}")
        e("s_nop 7")
        self.pack_dw("v24", "v16", "v25", "v78", "v79", "s[66:67]")
        e("s_mov_b64 exec, 0xffff")
        e("buffer_store_dword v24, v77, s[16:19], 0 offen sc1")
        e("s_mov_b64 exec, -1")
        self.stamp(7)

    def s2k(self):
        e = self.e
        e("s_lshr_b32 s72, s69, 2")
        e(f"s_mul_i32 s30, s72, {32 * PO_BLK}")
        e(f"s_add_u32 s30, s30, {WS_PO}")
        e("v_and_b32 v9, 15, v0")
        e("v_lshrrev_b32 v4, 4, v0")
        e(f"v_mul_u32_u24 v7, {PO_BLK}, v9")
        e("v_add_u32 v7, s30, v7")
        e(f"v_add_u32 v6, {16 * PO_BLK}, v7")
        self.c("v7/v6: block of chunk r / 16+r ; v5/v3: + (8w + 2g)*16")
        e("s_lshl_b32 s31, s3, 7")
        e("v_lshl_add_u32 v5, v4, 5, s31")
        e("v_add_u32 v3, v6, v5")
        e("v_add_u32 v5, v7, v5")
        self.c("weight operand address: LDS_W + (32w + 8g + r4)*224 + ct*32 + (l&3)*8")
        e("v_bfe_u32 v12, v0, 2, 2")
        e("v_lshl_add_u32 v12, v4, 3, v12")
        e("v_mul_u32_u24 v12, 224, v12")
        e("v_and_b32 v11, 3, v0")
        e("v_lshl_add_u32 v12, v11, 3, v12")
        e("s_mul_i32 s30, s3, 7168")
        e(f"s_add_u32 s30, s30, {LDS_W}")
        e("v_add_u32 v12, s30, v12")
        e("s_lshl_b32 s30, s3, 9")
        e(f"s_add_u32 s30, s30, {LDS_O}")
        e("v_lshl_add_u32 v92, v0, 2, s30")
        e("s_lshl_b32 s30, s3, 8")
        e(f"s_add_u32 s30, s30, {LDS_O}")
        e("v_lshl_add_u32 v93, v0, 2, s30")
        e("s_and_b32 s30, s69, 3")
        e("s_mul_i32 s30, s30, 448")
        e("s_lshl_b32 s31, s3, 8")
        e("s_add_u32 s30, s30, s31")
        e(f"s_mul_i32 s31, s72, {ROW}")
        e("s_add_u32 s30, s30, s31")
        e(f"s_add_u32 s30, s30, {WS_Y}")
        e("v_lshl_add_u32 v94, v0, 2, s30")
        self.pack_dw_consts("v62", "v63", 66)
        e("s_cmp_eq_u32 s3, 0")
        e("s_cselect_b32 s70, -1, -1")
        e("s_cselect_b32 s71, -1, 0xffff")
        e("s_waitcnt vmcnt(0)")
        e("s_barrier")
        for ct in range(7):
            e(f"ds_read_b64_tr_b16 a[{4*ct}:{4*ct+1}], v12 offset:{ct*32}")
            e(f"ds_read_b64_tr_b16 a[{4*ct+2}:{4*ct+3}], v12 offset:{ct*32 + 896}")
        self.stamp(12)
        self.poll([(V(48, 4), "v7", 1024), (V(52, 4), "v6", 1024), (V(32, 4), "v5", 0), (V(36, 4), "v5", 16),
                   (V(40, 4), "v3", 0), (V(44, 4), "v3", 16)], 32, V(56, 6), "v95", unpack=False)
        self.stamp(15, "s7")
        self.stamp(6)
        self.unpack4(V(48, 4))
        self.unpack4(V(52, 4))
        e("v_max_f32 v13, v51, v55")
        self.unpack4(V(32, 4))
        e("v_max_f32_dpp v13, v13, v13 quad_perm:[1,0,3,2] row_mask:0xf bank_mask:0xf")
        self.unpack4(V(36, 4))
        e("v_max_f32_dpp v13, v13, v13 quad_perm:[2,3,0,1] row_mask:0xf bank_mask:0xf")
        self.unpack4(V(40, 4))
        e("v_max_f32_dpp v13, v13, v13 row_half_mirror row_mask:0xf bank_mask:0xf")
        self.unpack4(V(44, 4))
        e("v_max_f32_dpp v13, v13, v13 row_mirror row_mask:0xf bank_mask:0xf")
        e("s_nop 0")
        e("v_sub_f32 v8, v51, v13")
        e("v_sub_f32 v10, v55, v13")
        e("v_mul_f32 v8, s63, v8")
        e("v_mul_f32 v10, s63, v10")
        e("v_exp_f32 v8, v8")
        e("v_exp_f32 v10, v10")
        e("s_nop 0")
        for t in range(2):
            for q in range(4):
                r = 32 + 8 * t + 2 * q
                e(f"v_pk_mul_f32 v[{r}:{r+1}], v[{8+2*t}:{9+2*t}], v[{r}:{r+1}] op_sel_hi:[0,1]")
        for t in range(2):
            for q in range(4):
                r = 32 + 8 * t + 2 * q
                e(f"v_cvt_pk_bf16_f32 v{16+4*t+q}, v{r}, v{r+1}")
        e("v_mul_f32 v14, v8, v48")
        e("v_fma_f32 v14, v10, v52, v14")
        e("s_waitcnt lgkmcnt(0)")
        dpps = ["quad_perm:[1,0,3,2]", "quad_perm:[2,3,0,1]", "row_half_mirror", "row_mirror"]
        for k in range(14):
            ct = k % 7
            src = "v[16:19]" if k < 7 else "v[20:23]"
            cc = "0" if k < 7 else f"v[{64+4*ct}:{67+4*ct}]"
            e(f"v_mfma_f32_16x16x32_bf16 v[{64+4*ct}:{67+4*ct}], {src}, a[{4*ct}:{4*ct+3}], {cc}")
            if k % 2 == 1 and dpps:
                e(f"v_add_f32_dpp v14, v14, v14 {dpps.pop(0)} row_mask:0xf bank_mask:0xf")
        e("v_rcp_f32 v15, v14")
        e("v_mov_b32 v39, 0")
        e("s_nop 1")
        for ct in range(7):
            d = 64 + 4 * ct
            e(f"v_pk_add_f32 v[{d}:{d+1}], v[{d}:{d+1}], v[{d+2}:{d+3}]")
        for ct in range(7):
            d = 64 + 4 * ct
            e(f"v_add_f32 v{32+ct}, v{d}, v{d+1}")
        e("v_fma_f32 v13, -v15, v14, 1.0")
        e("v_fma_f32 v15, v13, v15, v15")
        self.rowscatter4(V(32, 4))
        self.rowscatter4(V(36, 4))
        e("ds_write_b32 v92, v32")
        e("ds_write_b32 v92, v36 offset:256")
        e("s_waitcnt lgkmcnt(0)")
        e("s_barrier")
        e("s_cmp_gt_u32 s3, 1")
        e("s_cbranch_scc1 L_end")
        for wv in range(8):
            e(f"ds_read_b32 v{32+wv}, v93 offset:{512*wv}")
        e("s_waitcnt lgkmcnt(4)")
        e("v_pk_add_f32 v[32:33], v[32:33], v[34:35]")
        e("s_waitcnt lgkmcnt(0)")
        e("v_pk_add_f32 v[36:37], v[36:37], v[38:39]")
        e("v_pk_add_f32 v[32:33], v[32:33], v[36:37]")
        e("v_add_f32 v32, v32, v33")
        e("v_mul_f32 v32, v32, v15")
        e("s_nop 1")
        self.pack_dw("v24", "v32", "v25", "v62", "v63", "s[66:67]")
        e("s_mov_b64 exec, s[70:71]")
        e("buffer_store_dword v24, v94, s[16:19], 0 offen sc1")
        e("s_mov_b64 exec, -1")
        self.stamp(7)

    def s3(self):
        e = self.e
        self.c("lane (gl = l&15, row = l>>4) ends up owning column 64w + 4gl + row of h1")
        self.srd(24, 32, 896)
        e("v_and_b32 v9, 15, v0")
        e("v_lshrrev_b32 v4, 4, v0")
        e("v_lshl_add_u32 v5, v9, 2, v4")
        e("s_lshl_b32 s30, s3, 6")
        e("v_add_lshl_u32 v5, v5, s30, 1")
        e("buffer_load_ushort v80, v5, s[24:27], 0 offen")
        e(f"v_add_u32 v86, {LDS_H}, v5")
        e(f"v_mul_u32_u24 v8, {4*ROW}, v4")
        e("v_lshl_add_u32 v8, v9, 4, v8")
        e("s_lshl_b32 s30, s3, 8")
        e(f"s_add_u32 s30, s30, {WS_Y}")
        e("v_add_u32 v8, s30, v8")
        e(f"v_add_u32 v10, {2*ROW}, v8")
        self.c("gate/up operand address: LDS_W + m*28672 + (32s + 8g + r)*64 + ct*32 + (l&3)*8")
        e("v_bfe_u32 v3, v0, 2, 2")
        e("v_lshl_add_u32 v3, v4, 3, v3")
        e("v_lshlrev_b32 v6, 6, v3")
        e("v_and_b32 v11, 3, v0")
        e("v_lshl_add_u32 v6, v11, 3, v6")
        e("s_and_b32 s30, s3, 1")
        e("s_mul_i32 s30, s30, 28672")
        e("s_bfe_u32 s31, s3, 0x10001")
        e("s_lshl_b32 s31, s31, 5")
        e("s_add_u32 s30, s30, s31")
        e("s_lshr_b32 s31, s3, 2")
        e(f"s_mul_i32 s31, s31, {7 * 2048}")
        e("s_add_u32 s30, s30, s31")
        e(f"s_add_u32 s30, s30, {LDS_W}")
        e("v_add_u32 v6, s30, v6")
        e("v_mul_u32_u24 v7, 0x380, v3")
        e("v_lshl_add_u32 v7, v11, 3, v7")
        e("s_lshl_b32 s30, s3, 7")
        e(f"s_add_u32 s30, s30, {LDS_W + 57344}")
        e("v_add_u32 v7, s30, v7")
        e("s_lshr_b32 s30, s3, 2")
        e("s_lshl_b32 s30, s30, 8")
        e("s_and_b32 s31, s3, 1")
        e("s_lshl_b32 s31, s31, 7")
        e("s_add_u32 s30, s30, s31")
        e("s_bfe_u32 s31, s3, 0x10001")
        e("s_lshl_b32 s31, s31, 6")
        e("s_add_u32 s30, s30, s31")
        e(f"s_add_u32 s30, s30, {LDS_GU}")
        e("v_lshl_add_u32 v88, v9, 2, s30")
        e("s_lshr_b32 s30, s3, 2")
        e("s_mul_i32 s30, s30, 448")
        e(f"s_add_u32 s30, s30, {LDS_H}")
        e("v_lshl_add_u32 v89, v4, 4, s30")
        self.c("activation lane map: f = 8*(l>>4) + (l&7)")
        e("v_and_b32 v11, 7, v0")
        e("v_lshl_add_u32 v90, v4, 3, v11")
        e("v_lshlrev_b32 v90, 2, v90")
        e(f"v_add_u32 v90, {LDS_GU}, v90")
        e("v_and_b32 v11, 1, v0")
        e("v_mov_b32 v91, 0x01000504")
        e("v_mov_b32 v92, 0x05040100")
        e("v_cmp_eq_u32 vcc, 1, v11")
        e(f"s_mul_i32 s30, s69, {ROW}")
        e("s_lshl_b32 s31, s3, 8")
        e("v_cndmask_b32 v91, v91, v92, vcc")
        e("s_add_u32 s30, s30, s31")
        e(f"s_add_u32 s30, s30, {WS_Z}")
        e("v_lshl_add_u32 v93, v0, 2, s30")
        self.pack_dw_consts("v60", "v61", 46)
        e("s_lshl_b32 s30, s3, 3")
        e(f"s_add_u32 s30, s30, {LDS_ST}")
        e("v_lshl_add_u32 v63, v4, 2, s30")
        e("v_mov_b32 v40, 0")
        e("s_mov_b32 s48, 0x00010001")
        e("s_mov_b32 s49, 0")
        e("s_mov_b64 exec, s[48:49]")
        e("ds_write_b32 v63, v40")
        e("s_mov_b64 exec, -1")
        self.c("stage-4 gather address: Z + (8i + (l>>3))*ROW + (j3>>2)*128 + (l&7)*16")
        e("v_lshrrev_b32 v62, 3, v0")
        e(f"v_mul_u32_u24 v62, {ROW}, v62")
        e("v_and_b32 v12, 7, v0")
        e("v_lshl_add_u32 v62, v12, 4, v62")
        e("s_lshr_b32 s30, s69, 2")
        e("s_lshl_b32 s30, s30, 7")
        e(f"s_add_u32 s30, s30, {WS_Z}")
        e("v_add_u32 v62, s30, v62")
        e("s_mov_b32 s40, 0xffff0000")
        e("s_mov_b32 s41, 0")
        e("s_mov_b32 s42, 0")
        e("s_mov_b32 s43, 0x0000ffff")
        e("s_mov_b32 s44, 0")
        e("s_mov_b32 s45, 0xffff0000")
        e("v_mov_b32 v81, 0x3d372713")
        e("s_waitcnt vmcnt(0)")
        e("s_barrier")
        for s in range(7):
            e(f"ds_read_b64_tr_b16 a[{4*s}:{4*s+1}], v6 offset:{s*2048}")
            e(f"ds_read_b64_tr_b16 a[{4*s+2}:{4*s+3}], v6 offset:{s*2048 + 256}")
        e("s_cmp_gt_u32 s3, 6")
        e("s_cbranch_scc1 L_s3_notr")
        for t in range(4):
            e(f"ds_read_b64_tr_b16 a[{32+4*t}:{33+4*t}], v7 offset:{t*32}")
            e(f"ds_read_b64_tr_b16 a[{34+4*t}:{35+4*t}], v7 offset:{t*32 + 3584}")
        e("L_s3_notr:")
        self.c("column sums of this wave's gate/up tile over its half of K (vector of ones)")
        for j in range(4):
            e(f"v_mov_b32 v{20+j}, 0x3f803f80")
        e("v_lshlrev_b32 v80, 16, v80")
        e("s_waitcnt lgkmcnt(0)")
        for s in range(7):
            cc = "0" if s == 0 else "v[16:19]"
            e(f"v_mfma_f32_16x16x32_bf16 v[16:19], v[20:23], a[{4*s}:{4*s+3}], {cc}")
        e("s_nop 7")
        e("s_mov_b64 exec, 0xffff")
        e("ds_write_b32 v88, v16 offset:512")
        e("s_mov_b64 exec, -1")
        e("s_waitcnt lgkmcnt(0)")
        e("s_barrier")
        e("ds_read_b32 v16, v90 offset:512")
        e("ds_read_b32 v17, v90 offset:768")
        e("ds_read_b32 v18, v90 offset:640")
        e("ds_read_b32 v19, v90 offset:896")
        e("s_waitcnt lgkmcnt(0)")
        e("v_add_f32 v94, v16, v17")
        e("v_add_f32 v84, v18, v19")
        e("s_cmp_gt_u32 s3, 6")
        e("s_cbranch_scc1 L_s3_nogather")
        self.stamp(12)
        self.poll([(V(32, 4), "v8", 0), (V(36, 4), "v8", ROW), (V(40, 4), "v10", 0), (V(44, 4), "v10", ROW)],
                  32, V(48, 4), "v12", backoff=self.bo3)
        self.stamp(15, "s7")
        self.stamp(6)
        for j in (0, 2):
            e(f"v_pk_add_f32 v[{32+j}:{33+j}], v[{32+j}:{33+j}], v[{36+j}:{37+j}]")
            e(f"v_pk_add_f32 v[{40+j}:{41+j}], v[{40+j}:{41+j}], v[{44+j}:{45+j}]")
        for j in (0, 2):
            e(f"v_pk_add_f32 v[{32+j}:{33+j}], v[{32+j}:{33+j}], v[{40+j}:{41+j}]")
        self.rowscatter4(V(32, 4))
        self.rne("v32", "v32")
        e("v_add_f32 v32, v32, v80")
        e("v_cvt_pk_bf16_f32 v36, v32, v32")
        e("ds_write_b16 v86, v36")
        e("v_lshlrev_b32 v40, 16, v36")
        e("v_mul_f32 v41, v40, v40")
        e("s_nop 0")
        for st in ("quad_perm:[1,0,3,2]", "quad_perm:[2,3,0,1]", "row_half_mirror", "row_mirror"):
            e(f"v_add_f32_dpp v40, v40, v40 {st} row_mask:0xf bank_mask:0xf")
            e(f"v_add_f32_dpp v41, v41, v41 {st} row_mask:0xf bank_mask:0xf")
            e("s_nop 0")
        e("s_nop 0")
        e("v_permlane16_swap_b32 v40, v41")
        e("s_nop 0")
        e("v_add_f32 v40, v40, v41")
        e("v_mov_b32 v41, v40")
        e("s_nop 1")
        e("v_permlane32_swap_b32 v40, v41")
        e("s_nop 0")
        e("v_add_f32 v40, v40, v41")
        e("s_mov_b64 exec, s[48:49]")
        e("ds_write_b32 v63, v40")
        e("s_mov_b64 exec, -1")
        e("L_s3_nogather:")
        e("s_waitcnt lgkmcnt(0)")
        e("s_barrier")
        regs = [64, 68, 72, 76, 48, 52, 56]
        for s in range(7):
            e(f"ds_read_b128 v[{regs[s]}:{regs[s]+3}], v89 offset:{64*s}")
        e(f"v_mov_b32 v8, {LDS_ST}")
        for k in range(4):
            e(f"ds_read_b128 v[{24+4*k}:{27+4*k}], v8 offset:{16*k}")
        for s in range(7):
            e(f"s_waitcnt lgkmcnt({10-s})")
            cc = "0" if s == 0 else "v[16:19]"
            e(f"v_mfma_f32_16x16x32_bf16 v[16:19], v[{regs[s]}:{regs[s]+3}], a[{4*s}:{4*s+3}], {cc}")
        e("s_waitcnt lgkmcnt(0)")
        for k in range(4):
            e(f"v_pk_add_f32 v[{24+4*k}:{25+4*k}], v[{24+4*k}:{25+4*k}], v[{26+4*k}:{27+4*k}]")
        e("v_pk_add_f32 v[24:25], v[24:25], v[28:29]")
        e("v_pk_add_f32 v[32:33], v[32:33], v[36:37]")
        e("v_pk_add_f32 v[24:25], v[24:25], v[32:33]")
        e(f"v_mul_f32 v44, 0x{F_INV448:08x}, v24")
        e(f"v_mul_f32 v42, 0x{F_INV448:08x}, v25")
        e("s_mov_b64 exec, 0xffff")
        e("ds_write_b32 v88, v16")
        e("s_mov_b64 exec, -1")
        e("v_fma_f32 v42, -v44, v44, v42")
        e("v_max_f32 v42, 0, v42")
        e("v_cvt_pk_bf16_f32 v40, v44, v42")
        e("v_and_b32 v42, 0xffff0000, v40")
        e("v_lshlrev_b32 v40, 16, v40")
        e(f"v_add_f32 v42, 0x{F_EPS:08x}, v42")
        self.rne("v42", "v42")
        e("v_sqrt_f32 v41, v42")
        e("s_nop 0")
        self.rne("v41", "v41")
        e("v_rcp_f32 v42, v41")
        e("s_waitcnt lgkmcnt(0)")
        e("s_barrier")
        e("s_cmp_gt_u32 s3, 6")
        e("s_cbranch_scc1 L_s3_w7")
        e("ds_read_b32 v16, v90")
        e("ds_read_b32 v17, v90 offset:256")
        e("ds_read_b32 v18, v90 offset:128")
        e("ds_read_b32 v19, v90 offset:384")
        e("s_waitcnt lgkmcnt(2)")
        e("v_add_f32 v16, v16, v17")
        e("v_fma_f32 v16, -v40, v94, v16")
        e("s_waitcnt lgkmcnt(0)")
        e("v_add_f32 v18, v18, v19")
        e("v_fma_f32 v18, -v40, v84, v18")
        e("v_mul_f32 v16, v16, v42")
        e("v_mul_f32 v18, v18, v42")
        e("v_cvt_pk_bf16_f32 v17, v16, v18")
        e("v_lshlrev_b32 v16, 16, v17")
        e("v_and_b32 v18, 0xffff0000, v17")
        e("v_mul_f32 v17, v16, v16")
        e("v_mul_f32 v17, v17, v16")
        e("v_fma_f32 v17, v17, v81, v16")
        e("v_mul_f32 v17, 0xc0135761, v17")
        e("v_min_f32 v17, 0x42fc0000, v17")
        e("v_exp_f32 v17, v17")
        e("s_nop 0")
        e("v_add_f32 v17, 1.0, v17")
        e("v_rcp_f32 v19, v17")
        e("s_nop 0")
        e("v_mul_f32 v20, v16, v19")
        self.rne("v20", "v20")
        e("v_mul_f32 v20, v20, v18")
        e("v_cvt_pk_bf16_f32 v20, v20, v20")
        e("s_nop 1")
        e("v_mov_b32_dpp v21, v20 quad_perm:[1,0,3,2] row_mask:0xf bank_mask:0xf")
        e("v_perm_b32 v20, v20, v21, v91")
        e("s_nop 1")
        for jj in range(4):
            e(f"v_mov_b32_dpp v{16+jj}, v20 row_newbcast:{2*jj} row_mask:0xf bank_mask:0xf")
        e("s_nop 1")
        for t in range(4):
            e(f"v_mfma_f32_16x16x32_bf16 v[{32+4*t}:{35+4*t}], v[16:19], a[{32+4*t}:{35+4*t}], 0")
        e("s_nop 5")
        e("v_cndmask_b32 v32, v32, v36, s[40:41]")
        e("v_cndmask_b32 v32, v32, v40, s[42:43]")
        e("s_nop 0")
        e("v_cndmask_b32 v32, v32, v44, s[44:45]")
        e("s_nop 1")
        self.pack_dw("v24", "v32", "v25", "v60", "v61", "s[46:47]")
        e("buffer_store_dword v24, v93, s[16:19], 0 offen sc1")
        self.stamp(7)
        e("s_waitcnt vmcnt(0)")
        e("s_barrier")
        e("s_branch L_end")
        self.c("---- stage 4: wave 7 of every 4th FFN workgroup sums 56 partial rows for 32 output columns ----")
        e("L_s3_w7:")
        e("s_and_b32 s30, s69, 3")
        e("s_cmp_lg_u32 s30, 0")
        e("s_cbranch_scc1 L_end")
        e("v_and_b32 v12, 7, v0")
        e("v_lshl_add_u32 v5, v12, 2, v4")
        e("s_lshl_b32 s30, s69, 3")
        e("v_add_lshl_u32 v5, v5, s30, 1")
        e(f"v_add_u32 v8, {LDS_H}, v5")
        e("ds_read_u16 v32, v8")
        self.srd(24, 50, 896)
        loads = []
        for i in range(7):
            e(f"v_add_u32 v{16+i}, {i*8*ROW}, v62")
            loads.append((V(64 + 4 * i, 4), f"v{16+i}", 0))
        e("s_mov_b32 s48, 0x00ff00ff")
        e("s_mov_b32 s49, 0x00ff00ff")
        e("s_waitcnt lgkmcnt(0)")
        e("v_lshlrev_b32 v32, 16, v32")
        e("s_barrier")
        self.stamp(10)
        self.poll(loads, 32, V(24, 7), "v95")
        self.stamp(11, "s7")
        self.stamp(8)
        for j in (0, 2):
            e(f"v_pk_add_f32 v[{64+j}:{65+j}], v[{64+j}:{65+j}], v[{68+j}:{69+j}]")
            e(f"v_pk_add_f32 v[{72+j}:{73+j}], v[{72+j}:{73+j}], v[{76+j}:{77+j}]")
            e(f"v_pk_add_f32 v[{80+j}:{81+j}], v[{80+j}:{81+j}], v[{84+j}:{85+j}]")
        for j in (0, 2):
            e(f"v_pk_add_f32 v[{64+j}:{65+j}], v[{64+j}:{65+j}], v[{72+j}:{73+j}]")
            e(f"v_pk_add_f32 v[{80+j}:{81+j}], v[{80+j}:{81+j}], v[{88+j}:{89+j}]")
        for j in (0, 2):
            e(f"v_pk_add_f32 v[{64+j}:{65+j}], v[{64+j}:{65+j}], v[{80+j}:{81+j}]")
        e("s_nop 0")
        for j in range(4):
            e(f"v_add_f32_dpp v{64+j}, v{64+j}, v{64+j} row_ror:8 row_mask:0xf bank_mask:0xf")
        self.rowscatter4(V(64, 4))
        self.rne("v64", "v64")
        e("v_add_f32 v64, v64, v32")
        e("v_cvt_pk_bf16_f32 v68, v64, v64")
        e("s_mov_b64 exec, s[48:49]")
        e("buffer_store_short v68, v5, s[24:27], 0 offen" + self.outfl)
        e("s_cmp_lg_u32 s69, 0")
        e("s_cbranch_scc1 L_s4_done")
        e("v_mov_b32 v8, s6")
        e("v_mov_b32 v9, 0")
        e("s_mov_b64 exec, 1")
        e("buffer_store_dword v8, v9, s[16:19], 0 offen sc1")
        e("L_s4_done:")
        e("s_mov_b64 exec, -1")
        self.stamp(9)

    def text(self):
        self.build()
        src = HDR + f"; @launch grid=(256,1,1) block=(512,1,1) lds={LDS_TOTAL}\n" + DOC
        src += '.amdgcn_target "amdgcn-amd-amdhsa--gfx950"\n.text\n'
        src += f".globl {KERN}\n.p2align 8\n.type {KERN},@function\n{KERN}:\n"
        src += "\n".join(self.o) + "\n"
        nacc = self.NS * 4
        src += f""".section .rodata,"a"
.p2align 6
.amdhsa_kernel {KERN}
  .amdhsa_next_free_vgpr {96 + nacc}
  .amdhsa_next_free_sgpr 102
  .amdhsa_accum_offset 96
  .amdhsa_group_segment_fixed_size 0
  .amdhsa_kernarg_size 96
  .amdhsa_user_sgpr_count 2
  .amdhsa_user_sgpr_kernarg_segment_ptr 1
  .amdhsa_system_sgpr_workgroup_id_x 1
.end_amdhsa_kernel
"""
        return src


if __name__ == "__main__":
    import argparse
    ap = argparse.ArgumentParser()
    ap.add_argument("-o", default="k10.s")
    ap.add_argument("--NS", type=int, default=32)
    ap.add_argument("--W0", type=int, default=12)
    ap.add_argument("--W", type=int, default=8)
    ap.add_argument("--stamps", action="store_true")
    ap.add_argument("--light", action="store_true")
    ap.add_argument("--wq_plain", action="store_true")
    ap.add_argument("--s2k", action="store_true")
    ap.add_argument("--dma_w", type=int, default=2)
    ap.add_argument("--outfl", default=" sc1")
    ap.add_argument("--bo2", default="")
    ap.add_argument("--bo3", default="")
    ap.add_argument("--W00", type=int, default=12)
    ap.add_argument("--W01", type=int, default=99)
    ap.add_argument("--x_nodma", action="store_true")
    ap.add_argument("--x_noq", action="store_true")
    ap.add_argument("--x_norole", action="store_true")
    a = ap.parse_args()
    g = Gen(NS=a.NS, W0=a.W0, W=a.W, stamps=a.stamps, light=a.light)
    if a.x_nodma:
        Gen.role_dma = lambda self: None
    g.wqfl = "" if a.wq_plain else " nt"
    g.W00 = a.W00
    g.W01 = a.W01
    g.bo2 = tuple(int(x) for x in a.bo2.split(",")) if a.bo2 else None
    g.bo3 = tuple(int(x) for x in a.bo3.split(",")) if a.bo3 else None
    g.outfl = a.outfl
    g.dma_w = a.dma_w
    g.s2kflag = a.s2k
    g.x_noq = a.x_noq
    g.x_norole = a.x_norole
    open(a.o, "w").write(g.text())
```
